```python
import torch

def _softmax(x, axis=-1):
    return torch.softmax(x, dim=axis)
def _gelu(x):
    return torch.nn.functional.gelu(x, approximate="tanh")
def _silu(x):
    return torch.nn.functional.silu(x)
def _sigmoid(x):
    return torch.sigmoid(x)
def _layernorm(x, axis=-1, eps=1e-5):
    m = x.mean(dim=axis, keepdim=True)
    v = x.var(dim=axis, keepdim=True, unbiased=False)
    return (x - m) / torch.sqrt(v + eps)
def _scatter_add(tgt, idx, src, axis=0):
    return tgt.clone().index_add_(axis, idx, src)
def _segment_sum(src, seg, n):
    out = torch.zeros((n,) + src.shape[1:], dtype=src.dtype)
    return out.index_add_(0, seg, src)
def _pad(x, pw):
    flat = tuple(v for pair in reversed(pw) for v in pair)
    return torch.nn.functional.pad(x, flat)

kernel_name = 'standalone__convnext_block__vision'

def setup_inputs():

    _w = (lambda a: (lambda t: t.to(torch.bfloat16) if t.is_floating_point() else t)(torch.as_tensor(a)))
    H = W = 224
    C = 192
    return {
        "x": _w((lambda *s: torch.randn(*s, dtype=torch.bfloat16) * 0.05)(1, H, W, C)),
        "dw": _w((lambda *s: torch.randn(*s, dtype=torch.bfloat16) * 0.05)(7, 7, C)),
        "w1": _w((lambda *s: torch.randn(*s, dtype=torch.bfloat16) * 0.05)(C, 4 * C)),
        "w2": _w((lambda *s: torch.randn(*s, dtype=torch.bfloat16) * 0.05)(4 * C, C)),
    }

def reference(x, dw, w1, w2):
    B, H, W, C = x.shape
    pad = 3
    xp = _pad(x, ((0,0),(pad,pad),(pad,pad),(0,0)))
    out = torch.zeros_like(x)
    for i in range(7):
        for j in range(7):
            out = out + xp[:, i:i+H, j:j+W, :] * dw[i, j][None, None, None, :]
    h = _layernorm(out, axis=-1)
    return x + _gelu(h @ w1) @ w2
```

```python
class I:
    __slots__=("txt","kind","rd","wr","cost","passes","srd","swr","tag","cacc")
    def __init__(s,txt,kind,rd=(),wr=(),cost=4,passes=0,srd=(),swr=(),tag=None,cacc=None):
        s.txt=txt; s.kind=kind; s.rd=set(rd); s.wr=set(wr); s.cost=cost; s.passes=passes
        s.srd=set(srd); s.swr=set(swr); s.tag=tag; s.cacc=cacc
    def __repr__(s): return s.txt
def R(f,n,c=1): return [(f,n+i) for i in range(c)]
def rs(f,n,c=1): return f"{f}{n}" if c==1 else f"{f}[{n}:{n+c-1}]"
class Reg:
    def __init__(s,f,n,c=1): s.f=f; s.n=n; s.c=c
    def __str__(s): return rs(s.f,s.n,s.c)
    def regs(s): return R(s.f,s.n,s.c)
    def sub(s,o,c=1): return Reg(s.f,s.n+o,c)
def V(n,c=1): return Reg('v',n,c)
def A(n,c=1): return Reg('a',n,c)
def _ops(srcs):
    rd=[]; srd=[]
    for x in srcs:
        if isinstance(x,Reg): rd+=x.regs()
        elif isinstance(x,str):
            t=x.strip('-|')
            if t.startswith('s['):
                a,b=t[2:-1].split(':'); srd+=[f"s{i}" for i in range(int(a),int(b)+1)]
            elif t.startswith('s') and t[1:].isdigit(): srd.append(t)
            elif t in('vcc','exec','m0'): srd.append(t)
    return rd,srd
def fmt(x):
    if isinstance(x,float): return repr(x)
    if isinstance(x,int): return str(x) if -16<=x<=64 else hex(x&0xffffffff)
    return str(x)
TRANS=("v_exp_f32","v_rcp_f32","v_rsq_f32","v_exp_f16","v_rcp_f16","v_log_f32","v_sqrt_f32")
def valu(op,dst,*srcs,mod="",rmw=False,kind=None):
    rd,srd=_ops(srcs)
    base=op.replace("_sdwa","").replace("_e64","").replace("_e32","")
    k=kind or ("trans" if base in TRANS else "valu")
    if "dpp" in op: k="dpp"
    wr=[];swr=[]
    if isinstance(dst,Reg): wr=dst.regs()
    else: swr=_ops([dst])[1]
    if rmw: rd+=wr
    txt=f"{op} {dst}, "+", ".join(fmt(x) for x in srcs)+(" "+mod if mod else "")
    return I(txt,k,rd,wr,8 if k=="trans" else 4,srd=srd,swr=swr)
def salu(op,dst,*srcs):
    _,srd=_ops(srcs); swr=_ops([dst])[1] if dst is not None else []
    ops=([str(dst)] if dst is not None else [])+[fmt(x) for x in srcs]
    return I(f"{op} "+", ".join(ops),"salu",srd=srd,swr=swr)
def raw(txt,kind="salu",cost=4): return I(txt,kind,cost=cost)
def label(n): return I(f"{n}:","label",cost=0)
def mfma(shape,d,a,b,c):
    op,p={32:("v_mfma_f32_32x32x16_bf16",8),16:("v_mfma_f32_16x16x32_bf16",4),4:("v_mfma_f32_4x4x4_16b_bf16",2)}[shape]
    rd=a.regs()+b.regs()
    cc=None
    if isinstance(c,Reg): cc=c
    i=I(f"{op} {d}, {a}, {b}, {fmt(c)}","mfma",rd,d.regs(),8 if shape!=4 else 4,passes=p,cacc=cc)
    return i
def dsr(op,d,addr,off=0,mod=None):
    assert 0<=off<65536,off
    m=mod if mod is not None else (f"offset:{off}" if off else "")
    return I(f"{op} {d}, {addr} {m}".rstrip(),"dsr",addr.regs(),d.regs())
def dsw(op,addr,data,off=0):
    assert 0<=off<65536,off
    cost={"ds_write_b128":20,"ds_write_b64":12}.get(op,8)
    return I(f"{op} {addr}, {data}"+(f" offset:{off}" if off else ""),"dsw",addr.regs()+data.regs(),cost=cost)
def dma(voff,srd,soff,off=0,aux=""):
    _,s=_ops([srd,soff if isinstance(soff,str) else "0"])
    return I(f"buffer_load_dwordx4 {voff}, {srd}, {soff} offen"+(f" offset:{off}" if off else "")+(f" {aux}" if aux else "")+" lds","dma",voff.regs(),srd=s+["m0"],cost=8)
def bload(n,d,voff,srd,soff,off=0,aux=""):
    op={1:"buffer_load_dword",2:"buffer_load_dwordx2",4:"buffer_load_dwordx4"}[n]
    _,s=_ops([srd,soff if isinstance(soff,str) else "0"])
    assert 0<=off<4096
    return I(f"{op} {d}, {voff}, {srd}, {soff} offen"+(f" offset:{off}" if off else "")+(f" {aux}" if aux else ""),"vld",voff.regs(),d.regs(),srd=s,cost=8)
def bstore(n,d,voff,srd,soff,off=0,aux=""):
    op={1:"buffer_store_dword",2:"buffer_store_dwordx2",4:"buffer_store_dwordx4"}[n]
    _,s=_ops([srd,soff if isinstance(soff,str) else "0"])
    assert 0<=off<4096
    return I(f"{op} {d}, {voff}, {srd}, {soff} offen"+(f" offset:{off}" if off else "")+(f" {aux}" if aux else ""),"vst",voff.regs()+d.regs(),srd=s,cost=8,tag=("data",tuple(d.regs()),n))
def wait(vm=None,lgkm=None):
    p=[]
    if vm is not None: p.append(f"vmcnt({vm})")
    if lgkm is not None: p.append(f"lgkmcnt({lgkm})")
    return I("s_waitcnt "+" ".join(p),"wait",tag=("wait",vm,lgkm))
def nop(n): return I(f"s_nop {n}","nop",cost=4*(n+1),tag=("nop",n+1))
def barrier(): return I("s_barrier","barrier")

def allrd(i):
    r=set(i.rd)
    if i.cacc is not None: r|=set(i.cacc.regs())
    return r

def insert_waits(code,vm_pending=None):
    out=[]
    st={"l":[0,0,{},15],"v":[0,0,{},63]}
    n=len(code)
    def need(i,c):
        k=-1; iss,done,pend,_=st[c]
        for r in allrd(i)|i.wr:
            if r in pend and pend[r]>=done: k=max(k,pend[r])
        return k
    def emit(kl,kv):
        a={}
        for c,k in (("l",kl),("v",kv)):
            if k>=0:
                N=min(st[c][3],st[c][0]-1-k); a[c]=N; st[c][1]=max(st[c][1],st[c][0]-N)
        if a: out.append(wait(vm=a.get("v"),lgkm=a.get("l")))
    for idx,i in enumerate(code):
        if i.kind=="wait":
            if i.tag[2] is not None: st["l"][1]=max(st["l"][1],st["l"][0]-i.tag[2])
            if i.tag[1] is not None: st["v"][1]=max(st["v"][1],st["v"][0]-i.tag[1])
        emit(need(i,"l"),need(i,"v"))
        out.append(i)
        if i.kind in("dsr","dsw"):
            if i.kind=="dsr":
                for r in i.wr: st["l"][2][r]=st["l"][0]
            st["l"][0]+=1
        if i.kind in("vld","vst","dma"):
            if i.kind=="vld":
                for r in i.wr: st["v"][2][r]=st["v"][0]
            st["v"][0]+=1
        if i.kind=="mfma" and i.passes>=4:
            kl=kv=-1
            for j in range(idx+1,n):
                c=code[j]
                if c.kind in("wait","barrier","label"): break
                kl=max(kl,need(c,"l")); kv=max(kv,need(c,"v"))
                if c.kind=="mfma" and c.passes>=4: break
            emit(kl,kv)
    return out

def check_hazards(code,name=""):
    errs=[]
    pos=0; lastw={}
    lasts={}
    stdata={}
    MV={2:5,4:8,8:12}; MC={2:4,4:6,8:10}
    for i in code:
        if i.kind=="label": continue
        def dist(p): return pos-p-1
        isv=i.kind in("valu","trans","dpp","perml","rfl")
        for r in allrd(i)|i.wr:
            if r not in lastw: continue
            p,k,pi=lastw[r]; d=dist(p)
            isread=r in allrd(i)
            if k=="mfma":
                if i.kind=="mfma":
                    if r in i.rd: req=MV[pi.passes]
                    elif i.cacc is not None and r in i.cacc.regs():
                        same=(set(i.cacc.regs())==pi.wr and i.passes==pi.passes)
                        req=(2 if pi.passes==2 else 0) if same else MC[pi.passes]
                    else: req=MC[pi.passes]
                else: req=MV[pi.passes]
                if d<req: errs.append(f"{name}: MFMA hazard d={d}<{req}: {pi.txt} -> {i.txt}")
            elif k in("valu","trans","dpp","perml") and isread:
                req=0
                if i.kind=="mfma": req=2
                elif i.kind=="dpp": req=2
                elif i.kind=="perml": req=2
                elif i.kind=="rfl": req=1
                elif k=="trans" and i.kind!="trans": req=1
                if pi.tag=="sdwa" and isv: req=max(req,1)
                if d<req: errs.append(f"{name}: VALU hazard d={d}<{req}: {pi.txt} -> {i.txt}")
        for r in i.wr:
            if r in stdata and dist(stdata[r])<2: errs.append(f"{name}: store data WAR: {i.txt}")
        for s in i.srd:
            if s in lasts:
                p,k=lasts[s]; d=dist(p); req=0
                if k=="v":
                    if isv: req=2
                    elif i.kind in("vld","vst","dma"): req=5
                    elif i.kind=="salu": req=1
                elif k=="s" and s=="m0" and i.kind=="dma": req=1
                if d<req: errs.append(f"{name}: SGPR hazard {s} d={d}<{req}: {i.txt}")
        for r in i.wr: lastw[r]=(pos,i.kind,i)
        for s in i.swr: lasts[s]=(pos,"v" if isv else "s")
        if i.kind=="vst" and i.tag and i.tag[0]=="data" and i.tag[2]>=3:
            for r in i.tag[1]: stdata[r]=pos
        pos+= i.tag[1] if i.kind=="nop" else 1
    return errs

def est_cycles(code):
    t=0; pipe=0; prev=None
    for i in code:
        if i.kind=="label": continue
        c=i.cost
        if i.kind=="mfma":
            t=max(t,pipe); pipe=t+4*i.passes
        if i.kind in("salu","wait") and prev is not None and prev.kind=="mfma" and prev.passes>=4: c=0
        if i.kind in("dsr","dsw","dma","vld","vst") and prev is not None and prev.kind in("valu","trans","dpp"): c+=8
        t+=c; prev=i
    return t
```

```python
import struct, sys, math, os
from isa import *
def f32(x): return struct.unpack('<I', struct.pack('<f', x))[0]
K1=2*math.sqrt(2/math.pi)*math.log2(math.e); K3=K1*0.044715; AA=K3**(1/3); CC=K1/AA
ROWB=86016; XSZ=19267584
W2S=[0,24576]; P12=49152; H12=57344; HBASE=59392; HOFF=[24576,0]; W1BASE=114688; W1OFF=[24576,0]
OS=83968; DWB=102400; X12B=73728; ST12=98304; DUMMY=122880
L=V(0)
W1LO,W1HI=V(1),V(2)
def W2A(lct,hi): return V(3+2*lct+hi)
HW,HR,P12W,P12R,H12W,H12R=V(9),V(10),V(11),V(12),V(13),V(14)
DW1=V(15)
def DW2(k): return V(16+k)
def OSW(s): return V(19+s)
def RESV(s): return V(22+s)
def OSR(k): return V(25+k)
L16S=V(28); A12R,R12V,O12W=V(29),V(30),V(31)
def GT(i): return V(32+i)
def STG(b): return V(40+4*b,4)
def D(b): return V(48+16*b,16)
D12=V(80,4)
def ACC12(l): return V(84+4*l,4)
T12T=V(96,4)
def H12F(k): return V(100+4*k,4)
def ACC(s,l): return V(112+16*(3*s+l),16)
def XF(s,k): return A(48*s+4*k,4)
def W1F(k): return A(144+4*k,4)
def X12F(k): return A(192+4*k,4)
def HF(i): return A(216+4*(i%6),4)
def W2F(i): return A(240+4*(i%4),4)
def IDF(q): return A(240+4*q,4)
def RES(ti,q): return V(112+48*ti+q)
def RES12(k): return V(100+k)
def CD(i): return V(48+4*(i%4),4)
def CB(ti,u): return V(64+8*ti+u)
def CB12(i): return V(88+i)
def CA(th): return V(90+th)
def CA12(th): return V(94+th)
def XV(k): return V(32+k)
NBR=5
def BR(i): return A(8*(i%NBR),8)
def AR(i): return A(64+8*(i%3),8)
SX,SDW,SW1,SW2,SOUT="s[16:19]","s[20:23]","s[24:27]","s[28:31]","s[32:35]"
sW,sPM,sHN,sY0,sX0,sXB,sTB="s36","s37","s38","s39","s40","s41","s42"
sHH="s43"; MB1="s[44:45]"
def sM0X(k): return f"s{46+k}"
sCNT,sW1O,sW2O,sT0,sT1,sM1,sM2="s60","s61","s62","s63","s64","s65","s66"
sNA="s67"; sT2,sT3="s68","s69"
XAUX=os.environ.get("XAUX","nt")
STAUX=os.environ.get("STAUX","sc1")
DBG=os.environ.get("DBG","")

def prologue():
    c=[]; a=c.append
    a(salu("s_cmp_ge_u32",None,"s2",256)); a(raw("s_cbranch_scc1 L_END"))
    for i,r in enumerate((16,20,24,28,32)):
        a(I(f"s_load_dwordx2 s[{r}:{r+1}], s[0:1], {8*i}","salu"))
    t=[V(200+i) for i in range(40)]
    a(valu("v_lshrrev_b32",t[0],6,L))
    a(valu("v_lshrrev_b32",t[1],3,L))
    a(valu("v_readfirstlane_b32",sW,t[0],kind="rfl"))
    a(valu("v_and_b32",t[2],7,L))
    a(valu("v_and_b32",L,63,L))
    a(salu("s_lshr_b32",sY0,"s2",6))
    a(salu("s_lshl_b32",sT0,"s2",1)); a(salu("s_and_b32",sT0,sT0,12)); a(salu("s_add_u32",sY0,sY0,sT0))
    a(salu("s_bfe_u32",sX0,"s2",0x30003))
    a(salu("s_lshl_b32",sT0,"s2",3)); a(salu("s_and_b32",sT0,sT0,8)); a(salu("s_add_u32",sX0,sX0,sT0))
    a(salu("s_mul_i32",sY0,sY0,14)); a(salu("s_mul_i32",sX0,sX0,14))
    a(salu("s_mul_i32",sTB,sY0,ROWB)); a(salu("s_mul_i32",sT0,sX0,384)); a(salu("s_add_u32",sTB,sTB,sT0))
    a(salu("s_sub_u32",sXB,sTB,3*ROWB+3*384))
    a(salu("s_sub_u32",sX0,sX0,3))
    a(salu("s_mov_b32","s18",XSZ)); a(salu("s_mov_b32","s19",0x20000))
    a(salu("s_mov_b32",sT2,-20)); a(salu("s_movk_i32",sT3,384))
    a(valu("v_mov_b32",t[3],0x80000000))
    first=True
    for k in range(5):
        p,row,col,x,y=t[4],t[5],t[6],t[7],t[8]
        if k: a(valu("v_add_u32",p,32*k,t[1]))
        else: p=t[1]
        a(valu("v_mul_u32_u24",row,0xccd,p)); a(valu("v_lshrrev_b32",row,16,row))
        a(valu("v_mad_i32_i24",col,row,sT2,p))
        a(valu("v_add_u32",x,sX0,col)); a(valu("v_cmp_gt_u32","vcc",224,x))
        a(valu("v_bfe_u32",x,col,1,3)); a(valu("v_xor_b32",x,x,t[2]))
        a(valu("v_mul_u32_u24",y,ROWB,row)); a(valu("v_mad_u32_u24",y,col,sT3,y))
        a(valu("v_lshl_add_u32",y,x,4,y)); a(valu("v_add_u32",y,sXB,y))
        a(valu("v_cndmask_b32",XV(k),t[3],y,"vcc"))
        a(valu("v_add_u32",XV(k+5),8*ROWB,XV(k)))
        a(salu("s_add_u32",sT0,sW,4*k)); a(salu("s_mul_i32",sT1,sT0,205)); a(salu("s_lshr_b32",sT1,sT1,10))
        a(salu("s_mul_i32",sT1,sT1,5)); a(salu("s_add_u32",sT0,sT0,sT1)); a(salu("s_lshl_b32",sM0X(k),sT0,10))
        a(salu("s_add_u32",sM0X(k+5),sM0X(k),40960))
        if k<2:
            a(valu("v_add_u32",XV(k+10),16*ROWB,XV(k))); a(salu("s_add_u32",sM0X(k+10),sM0X(k),81920))
        if k==2:
            a(salu("s_cmp_lt_u32",None,sW,2))
            a(salu("s_cselect_b32",sT1,16*ROWB,0x40000000))
            a(salu("s_add_u32",sT0,sM0X(2),81920))
            a(salu("s_cmp_lt_u32",None,sW,2))
            a(salu("s_cselect_b32",sM0X(12),sT0,DUMMY))
            a(valu("v_add_u32",XV(12),sT1,XV(2)))
        if first: a(wait(lgkm=0)); first=False
        for kk in (k,k+5,k+10):
            if kk<=12:
                a(salu("s_mov_b32","m0",sM0X(kk))); a(nop(0)); a(dma(XV(kk),SX,0,aux=XAUX))
    a(salu("s_mov_b32","s22",18816)); a(salu("s_mov_b32","s23",0x20000))
    a(salu("s_mul_i32",sT0,sW,320)); a(valu("v_add_u32",t[4],sT0,L))
    a(salu("s_mul_i32",sT1,sW,5120)); a(salu("s_add_u32",sT1,sT1,DWB))
    for i in range(5):
        U,tp=t[5],t[6]
        a(valu("v_add_u32",U,64*i,t[4])); a(valu("v_mul_u32_u24",tp,0xa3e,U)); a(valu("v_lshrrev_b32",tp,16,tp))
        a(valu("v_sub_u32",U,U,tp)); a(valu("v_lshlrev_b32",t[10+i],4,U))
        a(salu("s_add_u32","m0",sT1,1024*i)); a(nop(0)); a(dma(t[10+i],SDW,0))
    a(salu("s_mov_b32","s26",294912)); a(salu("s_mov_b32","s27",0x20000))
    a(salu("s_mov_b32","s30",294912)); a(salu("s_mov_b32","s31",0x20000))
    a(salu("s_mov_b32","s34",XSZ)); a(salu("s_mov_b32","s35",0x20000))
    a(salu("s_lshr_b32",sPM,sW,1)); a(salu("s_and_b32",sHN,sW,1)); a(salu("s_xor_b32",sHH,sPM,sHN))
    a(salu("s_mov_b32",sNA,f32(-AA)))
    a(salu("s_mov_b32","s44",0xcccccccc)); a(salu("s_mov_b32","s45",0xcccccccc))
    cS,rp,g,g0,g1,l16=t[0],t[1],t[2],t[3],t[4],t[5]
    a(valu("v_and_b32",cS,3,L)); a(valu("v_bfe_u32",rp,L,2,2)); a(valu("v_lshrrev_b32",g,4,L))
    a(valu("v_and_b32",g0,1,g)); a(valu("v_lshrrev_b32",g1,5,L)); a(valu("v_lshlrev_b32",l16,4,L))
    lp=t[6]
    a(valu("v_mul_u32_u24",lp,20,g1)); a(valu("v_add_u32",lp,lp,g0)); a(valu("v_lshlrev_b32",lp,7,lp))
    a(salu("s_mul_i32",sT0,sW,12)); a(salu("s_mov_b32",sT2,-7)); a(salu("s_movk_i32",sT3,10240))
    for ti in range(3):
        P,Rr,j,b=t[7],t[8],t[9],t[15]
        a(valu("v_add_u32",P,sT0,cS))
        if ti: a(valu("v_add_u32",P,4*ti,P))
        a(valu("v_mul_u32_u24",Rr,0x2493,P)); a(valu("v_lshrrev_b32",Rr,16,Rr))
        a(valu("v_mad_i32_i24",j,Rr,sT2,P)); a(valu("v_add_u32",j,j,rp))
        a(valu("v_mad_u32_u24",b,Rr,sT3,lp)); a(valu("v_lshl_add_u32",b,j,8,b))
        a(valu("v_and_b32",j,7,j)); a(valu("v_lshl_add_u32",CB(ti,0),j,4,b))
        for u in range(1,8): a(valu("v_xor_b32",CB(ti,u),16*u,CB(ti,0)))
    j,b=t[9],t[15]
    a(valu("v_add_u32",j,6,rp)); a(valu("v_add_u32",b,6*10240,lp)); a(valu("v_lshl_add_u32",b,j,8,b))
    a(valu("v_and_b32",j,7,j)); a(valu("v_lshl_add_u32",b,j,4,b))
    a(salu("s_lshl_b32",sT1,sW,5)); a(valu("v_xor_b32",CB12(0),sT1,b)); a(valu("v_xor_b32",CB12(1),16,CB12(0)))
    oh,ow,jj,i0,tp=t[7],t[8],t[9],t[15],t[16]
    a(valu("v_lshrrev_b32",oh,1,cS)); a(valu("v_and_b32",ow,1,cS))
    a(valu("v_lshl_add_u32",jj,rp,1,g0)); a(valu("v_sub_u32",jj,jj,ow)); a(valu("v_sub_u32",i0,g1,oh))
    a(salu("s_movk_i32",sT3,400)); a(valu("v_mov_b32",t[18],DWB))
    for th in range(4):
        ii=t[17]
        a(valu("v_add_u32",ii,2*th,i0)); a(valu("v_mad_i32_i24",tp,ii,7,jj))
        a(valu("v_max_u32",ii,ii,jj)); a(valu("v_cmp_gt_u32","vcc",7,ii)); a(nop(1))
        a(valu("v_cndmask_b32",tp,49,tp,"vcc")); a(valu("v_mad_u32_u24",CA(th),tp,sT3,t[18]))
        a(valu("v_add_u32",CA12(th),sT1,CA(th)))
    a(salu("s_movk_i32",sT2,128))
    for k in range(13):
        a(salu("s_add_u32","m0",sM0X(k),5120)); a(nop(0)); a(dma(XV(k),SX,sT2,aux=XAUX))
    lam,up,x,y=t[7],t[8],t[9],t[15]
    a(valu("v_lshrrev_b32",lam,3,L)); a(valu("v_and_b32",up,7,L))
    a(valu("v_and_b32",x,3,lam)); a(valu("v_lshlrev_b32",x,2,x)); a(valu("v_add_u32",x,x,g1))
    a(valu("v_mul_u32_u24",x,1536,x))
    a(valu("v_lshlrev_b32",y,2,g0)); a(valu("v_xor_b32",y,y,up)); a(valu("v_lshl_add_u32",DW1,y,4,x))
    for k in range(3):
        a(valu("v_add_u32",x,64*k,L)); a(valu("v_mul_u32_u24",x,0xaab,x)); a(valu("v_bfe_u32",x,x,17,1))
        a(valu("v_lshlrev_b32",x,6,x)); a(valu("v_xor_b32",DW2(k),x,l16))
    a(salu("s_mul_i32",sW1O,sW,73728)); a(salu("s_mul_i32",sW2O,sW,6144))
    a(salu("s_add_u32",sM1,sW2O,W1BASE)); a(salu("s_mov_b32",sM2,sW2O))
    c+=w1_dma(0,flat=True)
    hb,pc,x,y,z=t[7],t[8],t[9],t[15],t[16]
    a(valu("v_lshrrev_b32",hb,1,rp))
    a(valu("v_lshl_add_u32",x,g1,2,rp))
    a(valu("v_xor_b32",y,sHH,hb)); a(valu("v_lshlrev_b32",y,6,y)); a(valu("v_lshl_add_u32",y,x,7,y))
    a(valu("v_lshl_add_u32",y,g0,5,y)); a(valu("v_lshl_add_u32",y,cS,3,y))
    a(salu("s_mul_i32",sT0,sPM,12288)); a(salu("s_add_u32",sT1,sT0,W1BASE)); a(salu("s_sub_u32",sT2,W1BASE,sT0))
    a(valu("v_add_u32",W1LO,sT1,y)); a(valu("v_add_u32",W1HI,sT2,y))
    a(valu("v_and_b32",pc,1,cS)); a(valu("v_lshlrev_b32",pc,1,pc)); a(valu("v_lshrrev_b32",z,1,cS)); a(valu("v_add_u32",pc,pc,z))
    a(valu("v_mul_u32_u24",y,384,x)); a(valu("v_lshl_add_u32",y,g0,5,y)); a(valu("v_lshl_add_u32",y,pc,3,y))
    a(salu("s_mul_i32",sT1,sHN,3))
    for lct in range(3):
        a(salu("s_add_u32",sT2,sT1,lct)); a(valu("v_xor_b32",z,sT2,hb)); a(valu("v_lshl_add_u32",z,z,6,y))
        a(valu("v_add_u32",W2A(lct,0),sT0,z))
        a(valu("v_subrev_u32",W2A(lct,1),sT0,z)); a(valu("v_add_u32",W2A(lct,1),12288,W2A(lct,1)))
    a(salu("s_add_u32",sT1,sT0,HBASE)); a(valu("v_add_u32",HR,sT1,l16))
    a(salu("s_lshl_b32",sT2,sHN,11)); a(valu("v_add_u32",HW,sT2,HR))
    a(salu("s_lshl_b32",sT1,sHH,1)); a(salu("s_add_u32",sT1,sT1,sPM)); a(salu("s_lshl_b32",sT1,sT1,10)); a(valu("v_add_u32",P12W,sT1,l16))
    a(valu("v_lshl_add_u32",x,g,2,cS)); a(valu("v_lshlrev_b32",x,4,x)); a(valu("v_lshl_add_u32",x,rp,2,x))
    a(salu("s_lshl_b32",sT1,sHH,11)); a(salu("s_lshl_b32",sT2,sPM,8)); a(salu("s_add_u32",sT1,sT1,sT2)); a(salu("s_add_u32",sT1,sT1,P12))
    a(valu("v_add_u32",P12R,sT1,x))
    a(valu("v_lshlrev_b32",x,6,g0)); a(valu("v_lshl_add_u32",x,cS,4,x)); a(valu("v_lshl_add_u32",x,g1,3,x)); a(valu("v_lshl_add_u32",x,rp,1,x))
    a(salu("s_lshl_b32",sT1,sHH,8)); a(salu("s_lshl_b32",sT2,sPM,7)); a(salu("s_add_u32",sT1,sT1,sT2)); a(salu("s_add_u32",sT1,sT1,H12))
    a(valu("v_add_u32",H12W,sT1,x))
    a(valu("v_lshlrev_b32",x,6,g1)); a(valu("v_lshl_add_u32",x,cS,4,x))
    a(salu("s_lshl_b32",sT1,sPM,8)); a(salu("s_add_u32",sT1,sT1,H12)); a(valu("v_add_u32",H12R,sT1,x))
    a(salu("s_mov_b32",sT2,-7)); a(salu("s_movk_i32",sT3,400)); a(salu("s_mul_i32",sT1,sHN,192))
    ch,oh,ow=t[17],t[18],t[19]
    a(valu("v_lshl_add_u32",ch,g1,4,sT1)); a(valu("v_lshrrev_b32",oh,1,rp)); a(valu("v_and_b32",ow,1,rp))
    a(salu("s_lshl_b32",sT0,sPM,3))
    for s in range(3):
        P,Rr,Cc=t[9],t[15],t[16]
        a(valu("v_lshl_add_u32",P,g0,2,cS)); a(valu("v_add_u32",P,sT0,P))
        if s: a(valu("v_add_u32",P,16*s,P))
        a(valu("v_mul_u32_u24",Rr,0x2493,P)); a(valu("v_lshrrev_b32",Rr,16,Rr)); a(valu("v_mad_i32_i24",Cc,Rr,sT2,P))
        a(valu("v_lshl_add_u32",Rr,Rr,1,oh)); a(valu("v_lshl_add_u32",Cc,Cc,1,ow))
        a(valu("v_mad_u32_u24",P,Rr,14,Cc)); a(valu("v_mad_u32_u24",P,P,sT3,ch)); a(valu("v_add_u32",OSW(s),OS,P))
        a(valu("v_mul_u32_u24",Rr,ROWB,Rr)); a(valu("v_mul_u32_u24",Cc,384,Cc)); a(valu("v_add3_u32",RESV(s),Rr,Cc,ch))
    for k in range(3):
        x=t[9]
        a(valu("v_add_u32",x,56*k,L)); a(valu("v_mul_u32_u24",t[15],0xaab,x)); a(valu("v_lshrrev_b32",t[15],16,t[15]))
        a(valu("v_add_u32",x,x,t[15])); a(valu("v_lshlrev_b32",x,4,x)); a(valu("v_add_u32",OSR(k),OS,x))
    a(valu("v_cmp_gt_u32","vcc",56,L)); a(valu("v_mov_b32",t[9],0x80000000)); a(nop(0)); a(valu("v_cndmask_b32",L16S,t[9],l16,"vcc"))
    lc,x,y=t[9],t[15],t[16]
    a(salu("s_lshl_b32",sT0,sPM,1)); a(valu("v_mov_b32",lc,sT0)); a(valu("v_cmp_gt_u32","vcc",32,L)); a(nop(1)); a(valu("v_cndmask_b32",lc,1,lc,"vcc"))
    a(valu("v_and_b32",x,0x1f0,l16)); a(valu("v_lshl_add_u32",x,lc,12,x)); a(salu("s_lshl_b32",sT0,sHN,11)); a(valu("v_add_u32",A12R,sT0,x))
    a(valu("v_lshl_add_u32",x,ow,1,oh)); a(valu("v_lshlrev_b32",x,3,x)); a(valu("v_lshl_add_u32",x,g0,5,x)); a(valu("v_lshl_add_u32",x,lc,6,x)); a(valu("v_add_u32",x,sT1,x))
    a(valu("v_lshrrev_b32",y,1,cS)); a(valu("v_and_b32",lc,1,cS))
    a(valu("v_mul_u32_u24",t[17],ROWB,y)); a(valu("v_mul_u32_u24",t[18],384,lc)); a(valu("v_add3_u32",R12V,t[17],t[18],x)); a(valu("v_add_u32",R12V,12*ROWB+12*384,R12V))
    a(valu("v_mad_u32_u24",y,y,14,lc)); a(valu("v_mad_u32_u24",y,y,sT3,x)); a(valu("v_add_u32",O12W,OS+(12*14+12)*400,y))
    key,val,x=t[9],t[15],t[16]
    a(valu("v_bfe_u32",key,L,3,2)); a(valu("v_lshlrev_b32",key,1,key)); a(valu("v_bfe_u32",x,L,1,1)); a(valu("v_add_u32",key,key,x))
    a(valu("v_and_b32",x,1,rp)); a(valu("v_xor_b32",x,x,g1)); a(valu("v_lshl_add_u32",key,x,4,key))
    a(valu("v_and_b32",x,1,L)); a(valu("v_lshlrev_b32",x,4,x)); a(valu("v_mov_b32",val,0x3f80)); a(valu("v_lshlrev_b32",val,x,val))
    for d in range(8):
        a(valu("v_cmp_eq_u32","vcc",d,key)); a(nop(1)); a(valu("v_cndmask_b32",x,0,val,"vcc")); a(valu("v_accvgpr_write_b32",A(240+d),x))
    a(salu("s_mov_b32","vcc_lo",0xaaaaaaaa)); a(salu("s_mov_b32","vcc_hi",0xaaaaaaaa))
    return c

def w1_dma(slot,flat=False):
    out=[]
    for i in range(6):
        m=salu("s_add_u32","m0",sM1,W1OFF[slot]+4096*(i//4)) if i%4==0 else None
        s=salu("s_add_u32",sT0,sW1O,(i>>1)*24576+(i&1)*3072-1024*(i%4))
        d=dma(DW1,SW1,sT0,off=1024*(i%4))
        out.append((m,s,d))
    adv=salu("s_add_u32",sW1O,sW1O,128)
    if flat: return [x for tr in out for x in tr if x is not None]+[adv]
    return out,adv
def w2_dma(slot):
    out=[]
    for i in range(6):
        m=salu("s_add_u32","m0",sM2,W2S[slot]+4096*(i//4)) if i%4==0 else None
        s=salu("s_add_u32",sW2O,sW2O,4096) if i==4 else None
        d=dma(DW2(i%3),SW2,sW2O,off=1024*(i%4))
        out.append((m,s,d))
    adv=salu("s_add_u32",sW2O,sW2O,24576-4096)
    return out,adv

TR="ds_read_b64_tr_b16"
def conv_chunk(ch,state):
    slot=(ch&1)*5120
    res=[]
    aq=[]
    a0=state["a"]
    for ql in range(16):
        q=16*ch+ql
        aq.append([dsr(TR,AR(a0+len(aq)).sub(2*th,2),CA(th),8*q) for th in range(4)])
        for ti in range(3): res.append((a0+len(aq)-1,CB(ti,ql>>1),ql&1,RES(ti,q)))
    for i in range(4):
        aq.append([dsr(TR,AR(a0+len(aq)).sub(2*th,2),CA12(th),8*(16*ch+i)) for th in range(4)])
        res.append((a0+len(aq)-1,CB12(i>>1),i&1,RES12(4*ch+i)))
    state["a"]=a0+len(aq)
    n=len(res); r0=state["r"]; state["r"]=r0+n
    def bl(r):
        ai,ad,half,_=res[r]
        return [dsr(TR,BR(r0+r).sub(2*th,2),ad,th*10240+slot+8*half) for th in range(4)]
    def sel(r):
        d=CD(r0+r); dst=res[r][3]
        return [valu("v_cndmask_b32",d.sub(0),d.sub(0),d.sub(1),"vcc"),valu("v_cndmask_b32",d.sub(2),d.sub(2),d.sub(3),"vcc"),
                valu("v_cndmask_b32",dst,d.sub(0),d.sub(2),MB1)]
    AH=NBR-1
    pre=aq[0]+aq[1]
    c=[]
    for r in range(min(AH,n)): c+=bl(r)
    anext=2; apend=[]
    for r in range(n):
        ai=res[r][0]; Af=AR(ai); Bf=BR(r0+r); d=CD(r0+r)
        nb=bl(r+AH) if r+AH<n else []
        if not apend and anext<len(aq) and anext-2<=ai-a0:
            apend=list(aq[anext]); anext+=1
        c.append(mfma(16,d,Af.sub(0,4),Bf.sub(0,4),0))
        c+=nb[:2]
        for _ in range(2 if r>=44 else 1):
            if apend: c.append(apend.pop(0))
        s=sel(r-2) if r>=2 else []
        c+=s[:2]
        c.append(mfma(16,d,Af.sub(4,4),Bf.sub(4,4),d))
        c+=nb[2:]
        for _ in range(2 if r>=44 else 1):
            if apend: c.append(apend.pop(0))
        c+=s[2:]
    assert anext==len(aq) and not apend
    tail=sel(n-2)+[nop(3)]+sel(n-1)
    return pre,c,tail

def conv_all():
    st={"a":0,"r":0}
    p0,c0,t0=conv_chunk(0,st); p1,c1,t1=conv_chunk(1,st); p2,c2,t2=conv_chunk(2,st)
    c=[wait(vm=19),barrier()]+p0+c0+p1+t0
    c+=[wait(vm=6,lgkm=8),barrier()]
    c.append(salu("s_movk_i32",sT2,256))
    x2=[]
    for k in range(13): x2+=[salu("s_mov_b32","m0",sM0X(k)),nop(0),dma(XV(k),SX,sT2,aux=XAUX)]
    c+=c1[:16]+x2+c1[16:]+p2+t1
    c+=[wait(vm=0),barrier()]+c2+t2
    return c

def pk(op,d,*srcs,mod=""): return valu(op,d,*srcs,mod=mod)
def layernorm():
    c=[]; a=c.append
    S=[V(48+2*i,2) for i in range(4)]; Q=[V(56+2*i,2) for i in range(4)]; RN=[V(64+2*i,2) for i in range(4)]
    def pair(i,q): return V(RES(i,q).n,2) if i<3 else V(RES12(q).n,2)
    def stats(tiles,nq):
        for q in range(0,nq,2):
            for i in tiles:
                x=pair(i,q)
                if q==0: a(pk("v_pk_mul_f32",Q[i],x,x))
                else: a(pk("v_pk_fma_f32",Q[i],x,x,Q[i]))
                if q==2: a(pk("v_pk_add_f32",S[i],pair(i,0),x))
                elif q>2: a(pk("v_pk_add_f32",S[i],S[i],x))
        for i in tiles:
            a(valu("v_add_f32",S[i].sub(0),S[i].sub(0),S[i].sub(1))); a(valu("v_add_f32",S[i].sub(1),Q[i].sub(0),Q[i].sub(1)))
        if len(tiles)==1: a(nop(1))
        for qp in ("[1,0,3,2]","[2,3,0,1]"):
            for i in tiles:
                for h in (0,1): a(valu("v_add_f32_dpp",S[i].sub(h),S[i].sub(h),S[i].sub(h),mod=f"quad_perm:{qp} row_mask:0xf bank_mask:0xf"))
            if len(tiles)==1: a(nop(1))
    t=[V(72+i) for i in range(24)]
    g=t[0]
    stats([3],12)
    a(valu("v_lshrrev_b32",g,4,L)); a(valu("v_lshlrev_b32",t[1],5,g)); a(valu("v_add_u32",t[1],ST12,t[1]))
    a(salu("s_lshl_b32",sT0,sW,3)); a(valu("v_add_u32",t[2],sT0,t[1]))
    a(dsw("ds_write_b64",t[2],S[3]))
    a(wait(lgkm=0)); a(barrier())
    PS=V(88,8)
    a(dsr("ds_read_b128",PS.sub(0,4),t[1])); a(dsr("ds_read_b128",PS.sub(4,4),t[1],16))
    c+=w1_dma(1,flat=True)
    stats([0,1,2],48)
    a(pk("v_pk_add_f32",PS.sub(0,2),PS.sub(0,2),PS.sub(2,2))); a(pk("v_pk_add_f32",PS.sub(4,2),PS.sub(4,2),PS.sub(6,2)))
    a(pk("v_pk_add_f32",S[3],PS.sub(0,2),PS.sub(4,2)))
    for i in range(4):
        a(valu("v_mul_f32",S[i].sub(0),f32(1/192),S[i].sub(0)))
    for i in range(4):
        a(valu("v_mul_f32",Q[i].sub(0),S[i].sub(0),S[i].sub(0)))
    a(salu("s_mov_b32",sT1,f32(1/192)))
    for i in range(4):
        x=valu("v_fma_f32",Q[i].sub(0),S[i].sub(1),sT1,Q[i].sub(0)); x.txt=x.txt.replace(f", {Q[i].sub(0)}",f", -{Q[i].sub(0)}"); a(x)
    for i in range(4): a(valu("v_max_f32",Q[i].sub(0),0,Q[i].sub(0)))
    for i in range(4): a(valu("v_add_f32",Q[i].sub(0),f32(1e-5),Q[i].sub(0)))
    for i in range(4): a(valu("v_rsq_f32",Q[i].sub(0),Q[i].sub(0)))
    for i in range(4): a(valu("v_mul_f32",RN[i].sub(0),sNA,Q[i].sub(0)))
    for i in range(4):
        x=valu("v_mul_f32_e64",RN[i].sub(1),S[i].sub(0),RN[i].sub(0)); x.txt=x.txt.replace(f", {S[i].sub(0)}",f", -{S[i].sub(0)}"); a(x)
    e,cc,n=t[3],t[4],t[5]
    a(valu("v_and_b32",e,3,L)); a(valu("v_lshrrev_b32",n,2,L))
    a(valu("v_lshlrev_b32",cc,1,e)); a(valu("v_xor_b32",n,n,cc)); a(valu("v_lshlrev_b32",n,4,n)); a(valu("v_lshl_add_u32",n,e,9,n))
    a(salu("s_mul_i32",sT0,sW,3))
    for ti in range(3):
        a(salu("s_add_u32",sT1,sT0,ti)); a(salu("s_lshr_b32",sT2,sT1,1)); a(salu("s_mul_i32",sT2,sT2,12288))
        a(salu("s_and_b32",sT1,sT1,1)); a(salu("s_lshl_b32",sT1,sT1,8)); a(salu("s_add_u32",sT1,sT1,sT2))
        a(valu("v_add_u32",t[6+ti],sT1,n))
    a(valu("v_lshlrev_b32",t[9],6,e)); a(valu("v_lshl_add_u32",t[9],g,4,t[9]))
    a(salu("s_lshl_b32",sT1,sPM,8)); a(salu("s_lshl_b32",sT2,sHN,3)); a(salu("s_add_u32",sT1,sT1,sT2)); a(salu("s_add_u32",sT1,sT1,X12B))
    a(valu("v_add_u32",t[9],sT1,t[9]))
    M="op_sel:[0,0,1] op_sel_hi:[1,0,1]"
    for kp in range(6):
        for ti in range(3):
            for q in range(8*kp,8*kp+8,2): a(pk("v_pk_fma_f32",pair(ti,q),pair(ti,q),RN[ti],RN[ti],mod=M))
            for j in range(4): a(valu("v_cvt_pk_bf16_f32",RES(ti,8*kp+j),RES(ti,8*kp+2*j),RES(ti,8*kp+2*j+1)))
        for ti in range(3): a(dsw("ds_write_b128",t[6+ti],V(RES(ti,8*kp).n,4),2048*kp))
    for q in range(0,12,2): a(pk("v_pk_fma_f32",pair(3,q),pair(3,q),RN[3],RN[3],mod=M))
    for ch in range(3):
        for j in range(2): a(valu("v_cvt_pk_bf16_f32",RES12(4*ch+j),RES12(4*ch+2*j),RES12(4*ch+2*j+1)))
    for ch in range(3): a(dsw("ds_write_b64",t[9],V(RES12(4*ch).n,2),512*ch))
    XA=[[t[10],t[11]],[t[12],t[13]]]; X12A=t[14]
    h2,n=t[3],t[4]
    a(valu("v_lshrrev_b32",h2,5,L)); a(valu("v_lshlrev_b32",n,1,h2)); a(valu("v_xor_b32",n,n,L)); a(valu("v_lshlrev_b32",n,4,n))
    a(salu("s_mul_i32",sT0,sPM,18432)); a(salu("s_mul_i32",sT1,sPM,6144))
    a(valu("v_add_u32",XA[0][0],sT0,n)); a(valu("v_add_u32",XA[0][1],sT1,n))
    a(valu("v_xor_b32",XA[1][0],64,XA[0][0])); a(valu("v_xor_b32",XA[1][1],64,XA[0][1]))
    a(valu("v_and_b32",n,3,L)); a(valu("v_lshlrev_b32",n,4,n)); a(valu("v_lshl_add_u32",n,h2,6,n))
    a(salu("s_mul_i32",sT0,sPM,768)); a(salu("s_add_u32",sT0,sT0,X12B)); a(valu("v_add_u32",X12A,sT0,n))
    for tl in range(9):
        for q in range(2):
            a(bload(4,resfrag(tl,q),RESV(tl//3),SX,sTB,off=64*(tl%3)+32*q))
    a(wait(lgkm=0)); a(barrier())
    return c,XA,X12A
def resfrag(tl,q):
    f=2*tl+q
    if f<10: return V(ACC(1,2).n+4*f,4)
    f-=10
    return A(216+4*f,4) if f<6 else A(248+4*(f-6),4)

def w1_reads(k,slot):
    return [dsr(TR,W1F(k).sub(2*rd,2),W1LO if k<6 else W1HI,(32*(k>>1)+16*rd+8*(k&1))*128+W1OFF[slot]) for rd in range(2)]
def w2_reads(dst,k,lct,slot):
    return [dsr(TR,dst.sub(2*rd,2),W2A(lct,k>>1),(16*k+8*rd)*384+W2S[slot]-(12288 if k>=2 else 0)) for rd in range(2)]

def gelu_group(src,gi,stg,extra=None):
    ts=[GT(4*(gi%2)+j) for j in range(4)]; xs=[src.sub(j) for j in range(4)]
    if extra: xs=xs+[extra[0]]; ts=ts+[extra[1]]
    n=len(xs); f=[]
    for j in range(n): f.append(valu("v_fmaak_f32",ts[j],xs[j],xs[j],f32(CC)))
    for j in range(n): f.append(valu("v_mul_f32",ts[j],ts[j],xs[j]))
    for j in range(n): f.append(valu("v_exp_f32",ts[j],ts[j]))
    for j in range(n): f.append(valu("v_fma_f32",ts[j],ts[j],sNA,sNA))
    for j in range(n): f.append(valu("v_rcp_f32",ts[j],ts[j]))
    for j in range(n): f.append(valu("v_mul_f32",ts[j],ts[j],xs[j]))
    f.append(valu("v_cvt_pk_bf16_f32",stg.sub(0),ts[0],ts[1])); f.append(valu("v_cvt_pk_bf16_f32",stg.sub(1),ts[2],ts[3]))
    if extra: f.append(valu("v_cvt_pk_bf16_f32",extra[1],extra[1],extra[1]))
    return f

class Op:
    def __init__(s,inst,lo=0,hi=10**6,then=None,pre=None): s.i=inst; s.lo=lo; s.hi=hi; s.then=then; s.pre=pre
def schedule(M,vs,mem,smalls,sal,memcap=2,tailmem=True):
    n=len(M); out=[]; vs=list(vs); mem=list(mem); smalls=list(smalls); rel=[]
    def rem(): return sum(o.i.cost+(o.then.i.cost if o.then else 0) for o in vs)+sum(o.i.cost for o in mem+rel+smalls)
    for g in range(n):
        budget=(rem()+8*(n-g))/(n-g)
        out.append(M[g]); acc=8
        for k,s in enumerate(sal.get(g,[])):
            out.append(s); acc+=4 if k else 0
        k=0
        for o in [o for o in rel if o.lo<=g]:
            out.append(o.i); acc+=o.i.cost; rel.remove(o); k+=1
        av=sorted([o for o in mem if o.lo<=g],key=lambda o:o.hi)
        for o in av:
            if k>=memcap and o.hi>g+1: break
            out.append(o.i); acc+=o.i.cost; mem.remove(o); k+=1
        sm=None
        if smalls and smalls[0].lo<=g: sm=smalls.pop(0); assert sm.hi>g,("small late",g,sm.i)
        for o in smalls: assert o.hi>g+0
        force=max([i for i,o in enumerate(vs) if o.hi<=g+1],default=-1)
        cnt=0
        def take():
            nonlocal acc,cnt
            o=vs.pop(0); out.append(o.i); acc+=o.i.cost; cnt+=1
            if o.then: o.then.lo=max(o.then.lo,g+1); rel.append(o.then)
        if sm:
            while vs and vs[0].lo<=g and acc<32: take()
            out.append(sm.i); acc+=4
            if sm.then: sm.then.lo=max(sm.then.lo,g+3); rel.append(sm.then)
            if vs and vs[0].lo<=g: take()
        while vs and vs[0].lo<=g and (cnt<=force or acc+vs[0].i.cost/2<=budget): take()
        assert cnt>force,("valu deadline",g)
    assert not smalls and not mem,(len(smalls),len(mem))
    for o in vs:
        out.append(o.i)
        if o.then: rel.append(o.then)
    for o in rel: out.append(o.i)
    return out

LEAD=4
def g1_block(s,buf): return [mfma(32,D(buf),W1F(k),XF(s,k),D(buf) if k else 0) for k in range(12)]
def interval(j):
    p=j%2; first=(j==0); last=(j==11)
    M=[]; pos={}
    g2=[]
    if not first:
        for k in range(4):
            for l in range(3):
                for s in range(3): g2.append(mfma(32,ACC(s,l),W2F(3*k+l),HF(3*k+s),ACC(s,l)))
        cuts=[12,24,36]
    else:
        for tl in range(9):
            for q in range(2): g2.append(mfma(32,ACC(tl//3,tl%3),IDF(q),resfrag(tl,q),ACC(tl//3,tl%3) if q else 0))
        cuts=[6,12,18]
    gi={}
    def addg2(a,b):
        for i in range(a,b): gi[i]=len(M); M.append(g2[i])
    pos["b1"]=len(M); M+=g1_block(1,1-p); pos["e1"]=len(M)
    addg2(0,cuts[0])
    pos["b2"]=len(M); M+=g1_block(2,p); pos["e2"]=len(M)
    addg2(cuts[0],cuts[1])
    if not last:
        pos["b0"]=len(M); M+=g1_block(0,1-p); pos["e0"]=len(M)
    addg2(cuts[1],cuts[2])
    n=len(M)
    mem=[]; smalls=[]; sal={}
    if not first:
        for ph in range(12):
            lo=0 if ph<4 else gi[3*(ph-4)+2]+(1 if ph-4<6 else 0)
            for x in w2_reads(W2F(ph),ph//3,ph%3,1-p): mem.append(Op(x,lo,gi[3*ph]-LEAD+1 if ph<4 else gi[3*ph]-2))
        for k in range(4):
            for s in range(3):
                lo=0 if k<2 else gi[9*(k-2)+6+s]
                mem.append(Op(dsr("ds_read_b128",HF(3*k+s),HR,HOFF[1-p]+(4*s+k)*1024),lo,gi[9*k+s]-LEAD+1))
        for k in range(2): mem.append(Op(dsr("ds_read_b128",H12F(k),H12R,512*(1-p)+128*k),0,gi[9*k]-LEAD+1))
        for ph in range(6):
            for h in range(2): smalls.append(Op(mfma(4,ACC12(ph%3),W2F(ph).sub(2*h,2),H12F(ph//3).sub(2*h,2),ACC12(ph%3)),gi[3*ph]+h-(1 if ph else 0),gi[3*ph+2]+1))
    for h in range(2):
        mem.append(Op(dsr("ds_read2st64_b32",T12T.sub(2*h,2),P12R,mod=f"offset0:{16*p+4*h} offset1:{16*p+4*h+2}"),0,4))
    if not last:
        for k in range(12):
            for x in w1_reads(k,1-p): mem.append(Op(x,pos["b2"]+k,pos["b0"]+k-LEAD+1))
        for k in range(6):
            for h in range(2):
                o=Op(mfma(4,D12,W1F(k).sub(2*h,2),X12F(k).sub(2*h,2),D12 if (k or h) else 0),pos["b0"]+k,n-3)
                if k==5 and h==1: o.then=Op(dsw("ds_write_b128",P12W,D12,P12+4096*(1-p)))
                smalls.append(o)
    g=0
    lists=[]
    if j<=10 and not last: lists.append(w1_dma(p))
    lists.append(w2_dma(p))
    for tr,adv in lists:
        for m,s,d in tr:
            if m is not None: sal.setdefault(g,[]).append(m); g+=1
            if s is not None: sal.setdefault(g,[]).append(s)
            mem.append(Op(d,g,g+1)); g+=1
        sal.setdefault(g,[]).append(adv);
        g+=1
    vs=[]; gc=[1]
    def grp(s,buf,g,lo,hi,hb,extra=None):
        fr=g>>1; stg=STG(fr)
        ops=gelu_group(D(buf).sub(4*g,4),gc[0],stg.sub(2*(g&1),2),extra); gc[0]+=1
        o=[Op(x,lo,hi) for x in ops]
        k=-2 if extra else -1
        if g&1: o[k].then=Op(dsw("ds_write_b128",HW,stg,HOFF[hb]+(4*s+fr)*1024))
        if extra: o[-1].then=Op(dsw("ds_write_b16",H12W,extra[1],512*p))
        return o
    if first:
        for l in range(3):
            for h in range(2): vs.append(Op(valu("v_mov_b64",ACC12(l).sub(2*h,2),0)))
    vs+=grp(0,p,1,0,pos["b2"],p)
    vs+=[Op(valu("v_add_f32",T12T.sub(0),T12T.sub(0),T12T.sub(1)),4),Op(valu("v_add_f32",T12T.sub(2),T12T.sub(2),T12T.sub(3)),4),
         Op(valu("v_add_f32",T12T.sub(0),T12T.sub(0),T12T.sub(2)),4)]
    vs+=grp(0,p,2,0,pos["b2"],p,extra=(T12T.sub(0),T12T.sub(1)))
    vs+=grp(0,p,3,0,pos["b2"],p)
    for g_ in range(4): vs+=grp(1,1-p,g_,pos["e1"]+2,pos.get("b0",10**6),p)
    for g_ in range(4): vs+=grp(2,p,g_,pos["e2"]+2,(n-3) if not last else 10**6,p)
    if not last: vs+=grp(0,1-p,0,pos["e0"]+2,10**6,1-p)
    c=schedule(M,vs,mem,smalls,sal)
    return c

def pre_interval(XA,X12A):
    M=g1_block(0,0)
    def xr(s,k): return dsr("ds_read_b128",XF(s,k),XA[k&1][k>=6],2*s*12288+k*1024)
    c=[]
    for k in range(4): c+=w1_reads(k,0)+[xr(0,k)]
    mem=[]
    for k in range(4,12):
        for x in w1_reads(k,0)+[xr(0,k)]: mem.append(Op(x,0,k-3))
    for k in range(6): mem.append(Op(dsr("ds_read_b128",X12F(k),X12A,128*k),0,9))
    for s in (1,2):
        for k in range(12): mem.append(Op(xr(s,k),0,12))
    c+=schedule(M,[],mem,[],{},memcap=5)
    sm=[mfma(4,D12,W1F(k).sub(2*h,2),X12F(k).sub(2*h,2),D12 if (k or h) else 0) for k in range(6) for h in range(2)]
    gl=gelu_group(D(0).sub(0,4),0,STG(0).sub(0,2))
    c+=[sm[0],nop(1),sm[1],nop(1),sm[2],nop(1),sm[3],nop(1)]
    k=4
    for i,x in enumerate(gl):
        c.append(x)
        if i%2==1 and k<12: c.append(sm[k]); k+=1
    c.append(dsw("ds_write_b128",P12W,D12,P12))
    c+=[wait(vm=18,lgkm=0),barrier()]
    return c

def final():
    c=[]; a=c.append
    p=1
    def WF(k,l): return W1F(3*k+l)
    M=[]
    for s in range(3):
        for l in range(3):
            for k in range(4): M.append(mfma(32,ACC(s,l),WF(k,l),XF(0,4*s+k),ACC(s,l)))
    def hr(s,k): return dsr("ds_read_b128",XF(0,4*s+k),HR,HOFF[p]+(4*s+k)*1024)
    R12=V(108,2)
    for k in range(4): c+=w2_reads(WF(k,0),k,0,p)+[hr(0,k)]
    a(bload(2,R12,R12V,SX,sTB))
    mem=[]
    for l in (1,2):
        for k in range(4):
            for x in w2_reads(WF(k,l),k,l,p): mem.append(Op(x,0,max(1,4*l+k-3)))
    for k in range(2): mem.append(Op(dsr("ds_read_b128",H12F(k),H12R,512*p+128*k),0,3))
    for s in (1,2):
        for k in range(4): mem.append(Op(hr(s,k),0,9))
    smalls=[]
    for l in range(3):
        for k in range(2):
            for h in range(2):
                smalls.append(Op(mfma(4,ACC12(l),WF(k,l).sub(2*h,2),H12F(k).sub(2*h,2),ACC12(l)),5))
    A12W=V(110)
    vs=[Op(valu("v_lshlrev_b32",A12W,4,L)),Op(valu("v_add_u32",A12W,sT0,A12W))]
    sal={0:[salu("s_lshl_b32",sT0,sHN,1),salu("s_add_u32",sT0,sT0,sPM),salu("s_lshl_b32",sT0,sT0,10)]}
    for l in range(3): smalls[4*l+3].then=Op(dsw("ds_write_b128",A12W,ACC12(l),4096*l))
    def epi(s,l,lo):
        o=[]
        for q in range(2):
            r=ACC(s,l)
            for j in range(4): o.append(Op(valu("v_cvt_pk_bf16_f32",r.sub(8*q+j),r.sub(8*q+2*j),r.sub(8*q+2*j+1)),lo))
            o[-1].then=Op(dsw("ds_write_b128",OSW(s),r.sub(8*q,4),64*l+32*q))
        return o
    def stores(rows,tmp):
        o=[]
        return o
    for l in range(3): vs+=epi(0,l,4*l+4+3)
    c+=schedule(M[:20],vs,mem,smalls,sal,memcap=4)
    c+=[wait(lgkm=0),barrier()]
    SB=[V(48+4*i,4) for i in range(8)]
    sRow,sRow2="s70","s71"; RA=[V(32+i) for i in range(3)]
    def row_setup(r0):
        return [salu("s_add_u32",sT0,sW,r0),salu("s_mul_i32",sRow,sT0,ROWB),salu("s_add_u32",sRow,sRow,sTB),salu("s_add_u32",sRow2,sRow,2688),
                salu("s_mul_i32",sT0,sT0,5600)]+[valu("v_add_u32",RA[k],sT0,OSR(k)) for k in range(3)]
    def row_ops(b0):
        rd=[dsr("ds_read_b128",SB[(b0+k)%8],RA[k%3],2800*(k//3)) for k in range(6)]
        st=[bstore(4,SB[(b0+k)%8],L16S,SOUT,sRow if k<3 else sRow2,off=896*(k%3),aux=STAUX) for k in range(6)]
        return rd,st
    c+=row_setup(0)
    rd,st=row_ops(0)
    PT=V(84,16)
    mem=[Op(x,0,3) for x in rd]+[Op(x,3+i,4+i) for i,x in enumerate(st)]
    mem+=[Op(dsr("ds_read_b128",PT.sub(4*i,4),A12R,512*i),0,4) for i in range(4)]
    vs=[]
    for l in range(3): vs+=epi(1,l,max(0,12+4*l+4+3-20))
    t12=[]
    for j in range(4): t12.append(valu("v_add_f32",PT.sub(j),PT.sub(j),PT.sub(4+j)))
    for j in range(4): t12.append(valu("v_add_f32",PT.sub(8+j),PT.sub(8+j),PT.sub(12+j)))
    for j in range(4): t12.append(valu("v_add_f32",PT.sub(j),PT.sub(j),PT.sub(8+j)))
    for j in range(2):
        t12.append(valu("v_lshlrev_b32",PT.sub(4+2*j),16,R12.sub(j))); t12.append(valu("v_and_b32",PT.sub(5+2*j),0xffff0000,R12.sub(j)))
    for j in range(4): t12.append(valu("v_add_f32",PT.sub(j),PT.sub(j),PT.sub(4+j)))
    t12+=[valu("v_cvt_pk_bf16_f32",PT.sub(0),PT.sub(0),PT.sub(1)),valu("v_cvt_pk_bf16_f32",PT.sub(1),PT.sub(2),PT.sub(3))]
    t12=[Op(x,7) for x in t12]; t12[-1].then=Op(dsw("ds_write_b64",O12W,PT.sub(0,2)))
    vs+=t12
    c+=schedule(M[20:32],vs,mem,[],{},memcap=4)
    c+=[wait(lgkm=0),barrier()]
    c+=row_setup(4)
    rd,st=row_ops(6)
    mem=[Op(x,0,2) for x in rd]
    vs=epi(2,0,0)+epi(2,1,3)
    c+=schedule(M[32:36],vs,mem,[],{},memcap=4)
    c+=st
    for o in epi(2,2,0):
        c.append(o.i)
        if o.then: c.append(o.then.i)
    c+=[wait(lgkm=0),barrier()]
    c+=row_setup(8)
    rd,st=row_ops(4)
    c+=rd
    RB=[V(36+i) for i in range(3)]; sR3="s72"
    c+=[salu("s_mul_i32",sT0,sPM,ROWB),salu("s_mul_i32",sT1,sHN,2688),salu("s_add_u32",sR3,sT0,sT1),salu("s_add_u32",sR3,sR3,sTB),salu("s_add_u32",sR3,sR3,12*ROWB),
        salu("s_mul_i32",sT0,sW,2800),salu("s_add_u32",sT0,sT0,12*5600)]
    c+=[valu("v_add_u32",RB[k],sT0,OSR(k)) for k in range(3)]
    SC=[V(84+4*i,4) for i in range(3)]
    c+=[dsr("ds_read_b128",SC[k],RB[k]) for k in range(3)]
    c+=st
    c+=[bstore(4,SC[k],L16S,SOUT,sR3,off=896*k,aux=STAUX) for k in range(3)]
    return c

def endint(): return [wait(vm=0,lgkm=0),barrier()]

def build():
    segs=[]
    pro=prologue(); cv=conv_all(); ln,XA,X12A=layernorm(); pre=pre_interval(XA,X12A)
    i0=interval(0)+endint()
    head=insert_waits(pro+cv+ln+pre+i0)
    i1=insert_waits(interval(1)+endint()); i2=insert_waits(interval(2)+[salu("s_sub_u32",sCNT,sCNT,1),salu("s_cmp_lg_u32",None,sCNT,0)]+endint())
    i11=insert_waits(interval(11)+endint()); fin=insert_waits(final())
    errs=check_hazards(head+i1+i2+i1+i2+i11+fin,"all")
    for e in errs[:40]: print(e,file=sys.stderr)
    for nm,s in (("pro",pro),("conv",insert_waits(cv)),("ln",ln),("pre",insert_waits(pre)),("i0",insert_waits(i0)),("i1",i1),("i2",i2),("i11",i11),("fin",fin)):
        print(f"{nm}: {len(s)} insts est {est_cycles(s)} cyc",file=sys.stderr)
    code=head+[salu("s_mov_b32",sCNT,5),raw(".p2align 6","label",0),label("L_LOOP")]+i1+i2+[raw("s_cbranch_scc1 L_LOOP")]+i11+fin+[label("L_END")]
    return code,errs

HDR=open("standalone__convnext_block__vision.s.ref").read()
def emit(code,path):
    head=HDR[:HDR.index("; @launch")]
    s=head+"; @launch grid=(256,1,1) block=(256,1,1) lds=163840\n"
    s+='''.amdgcn_target "amdgcn-amd-amdhsa--gfx950"
.text
.globl standalone__convnext_block__vision_kernel
.p2align 8
.type standalone__convnext_block__vision_kernel,@function
standalone__convnext_block__vision_kernel:
'''
    for i in code: s+=("" if i.kind=="label" else "    ")+i.txt+"\n"
    s+='''s_endpgm
.section .rodata,"a"
.p2align 6
.amdhsa_kernel standalone__convnext_block__vision_kernel
  .amdhsa_next_free_vgpr 512
  .amdhsa_next_free_sgpr 96
  .amdhsa_accum_offset 256
  .amdhsa_group_segment_fixed_size 0
  .amdhsa_kernarg_size 56
  .amdhsa_user_sgpr_count 2
  .amdhsa_user_sgpr_kernarg_segment_ptr 1
  .amdhsa_system_sgpr_workgroup_id_x 1
.end_amdhsa_kernel
'''
    open(path,"w").write(s)
if __name__=="__main__":
    code,errs=build()
    out=sys.argv[1] if len(sys.argv)>1 else "standalone__convnext_block__vision.s"
    emit(code,out)
    print("hazard errors:",len(errs),file=sys.stderr)
```

```python
import struct, sys, math, os
from isa import *
def f32(x): return struct.unpack('<I', struct.pack('<f', x))[0]
K1=2*math.sqrt(2/math.pi)*math.log2(math.e); K3=K1*0.044715; AA=K3**(1/3); CC=K1/AA
ROWB=86016; XSZ=19267584
W2S=[0,24576]; P12=49152; H12=57344; HBASE=59392; HOFF=[24576,0]; W1BASE=114688; W1OFF=[24576,0]
OS=83968; DWB=102400; X12B=73728; ST12=98304; DUMMY=122880
L=V(0)
W1LO,W1HI=V(1),V(2)
def W2A(lct,hi): return V(3+2*lct+hi)
HW,HR,P12W,P12R,H12W,H12R=V(9),V(10),V(11),V(12),V(13),V(14)
DW1=V(15)
def DW2(k): return V(16+k)
def OSW(s): return V(19+s)
def RESV(s): return V(22+s)
def OSR(k): return V(25+k)
L16S=V(28); A12R,R12V,O12W=V(29),V(30),V(31)
def GT(i): return V(32+i)
def STG(b): return V(40+4*b,4)
def D(b): return V(48+16*b,16)
D12=V(80,4)
def ACC12(l): return V(84+4*l,4)
T12T=V(96,4)
def H12F(k): return V(100+4*k,4)
def ACC(s,l): return V(112+16*(3*s+l),16)
def XF(s,k): return A(48*s+4*k,4)
def W1F(k): return A(144+4*k,4)
def X12F(k): return A(192+4*k,4)
def HF(i): return A(216+4*(i%6),4)
def W2F(i): return A(240+4*(i%4),4)
def IDF(q): return A(240+4*q,4)
def RES(ti,q): return V(112+48*ti+q)
def RES12(k): return V(100+k)
def CD(i): return V(48+4*(i%4),4)
def CB(ti,u): return V(64+8*ti+u)
def CB12(i): return V(88+i)
def CA(th): return V(90+th)
def CA12(th): return V(94+th)
def XV(k): return V(32+k)
NBR=5
def BR(i): return A(8*(i%NBR),8)
def AR(i): return A(64+8*(i%3),8)
SX,SDW,SW1,SW2,SOUT="s[16:19]","s[20:23]","s[24:27]","s[28:31]","s[32:35]"
sW,sPM,sHN,sY0,sX0,sXB,sTB="s36","s37","s38","s39","s40","s41","s42"
sHH="s43"; MB1="s[44:45]"
def sM0X(k): return f"s{46+k}"
sCNT,sW1O,sW2O,sT0,sT1,sM1,sM2="s60","s61","s62","s63","s64","s65","s66"
sNA="s67"; sT2,sT3="s68","s69"
XAUX=os.environ.get("XAUX","nt")
STAUX=os.environ.get("STAUX","sc1")
DBG=os.environ.get("DBG","")

def prologue():
    c=[]; a=c.append
    a(salu("s_cmp_ge_u32",None,"s2",256)); a(raw("s_cbranch_scc1 L_END"))
    for i,r in enumerate((16,20,24,28,32)):
        a(I(f"s_load_dwordx2 s[{r}:{r+1}], s[0:1], {8*i}","salu"))
    t=[V(200+i) for i in range(40)]
    a(valu("v_lshrrev_b32",t[0],6,L))
    a(valu("v_lshrrev_b32",t[1],3,L))
    a(valu("v_readfirstlane_b32",sW,t[0],kind="rfl"))
    a(valu("v_and_b32",t[2],7,L))
    a(valu("v_and_b32",L,63,L))
    a(salu("s_lshr_b32",sY0,"s2",6))
    a(salu("s_lshl_b32",sT0,"s2",1)); a(salu("s_and_b32",sT0,sT0,12)); a(salu("s_add_u32",sY0,sY0,sT0))
    a(salu("s_bfe_u32",sX0,"s2",0x30003))
    a(salu("s_lshl_b32",sT0,"s2",3)); a(salu("s_and_b32",sT0,sT0,8)); a(salu("s_add_u32",sX0,sX0,sT0))
    a(salu("s_mul_i32",sY0,sY0,14)); a(salu("s_mul_i32",sX0,sX0,14))
    a(salu("s_mul_i32",sTB,sY0,ROWB)); a(salu("s_mul_i32",sT0,sX0,384)); a(salu("s_add_u32",sTB,sTB,sT0))
    a(salu("s_sub_u32",sXB,sTB,3*ROWB+3*384))
    a(salu("s_sub_u32",sX0,sX0,3))
    a(salu("s_mov_b32","s18",XSZ)); a(salu("s_mov_b32","s19",0x20000))
    a(salu("s_mov_b32",sT2,-20)); a(salu("s_movk_i32",sT3,384))
    a(valu("v_mov_b32",t[3],0x80000000))
    first=True
    for k in range(5):
        p,row,col,x,y=t[4],t[5],t[6],t[7],t[8]
        if k: a(valu("v_add_u32",p,32*k,t[1]))
        else: p=t[1]
        a(valu("v_mul_u32_u24",row,0xccd,p)); a(valu("v_lshrrev_b32",row,16,row))
        a(valu("v_mad_i32_i24",col,row,sT2,p))
        a(valu("v_add_u32",x,sX0,col)); a(valu("v_cmp_gt_u32","vcc",224,x))
        a(valu("v_bfe_u32",x,col,1,3)); a(valu("v_xor_b32",x,x,t[2]))
        a(valu("v_mul_u32_u24",y,ROWB,row)); a(valu("v_mad_u32_u24",y,col,sT3,y))
        a(valu("v_lshl_add_u32",y,x,4,y)); a(valu("v_add_u32",y,sXB,y))
        a(valu("v_cndmask_b32",XV(k),t[3],y,"vcc"))
        a(valu("v_add_u32",XV(k+5),8*ROWB,XV(k)))
        a(salu("s_add_u32",sT0,sW,4*k)); a(salu("s_mul_i32",sT1,sT0,205)); a(salu("s_lshr_b32",sT1,sT1,10))
        a(salu("s_mul_i32",sT1,sT1,5)); a(salu("s_add_u32",sT0,sT0,sT1)); a(salu("s_lshl_b32",sM0X(k),sT0,10))
        a(salu("s_add_u32",sM0X(k+5),sM0X(k),40960))
        if k<2:
            a(valu("v_add_u32",XV(k+10),16*ROWB,XV(k))); a(salu("s_add_u32",sM0X(k+10),sM0X(k),81920))
        if k==2:
            a(salu("s_cmp_lt_u32",None,sW,2))
            a(salu("s_cselect_b32",sT1,16*ROWB,0x40000000))
            a(salu("s_add_u32",sT0,sM0X(2),81920))
            a(salu("s_cmp_lt_u32",None,sW,2))
            a(salu("s_cselect_b32",sM0X(12),sT0,DUMMY))
            a(valu("v_add_u32",XV(12),sT1,XV(2)))
        if first: a(wait(lgkm=0)); first=False
        for kk in (k,k+5,k+10):
            if kk<=12:
                a(salu("s_mov_b32","m0",sM0X(kk))); a(nop(0)); a(dma(XV(kk),SX,0,aux=XAUX))
    a(salu("s_mov_b32","s22",18816)); a(salu("s_mov_b32","s23",0x20000))
    a(salu("s_mul_i32",sT0,sW,320)); a(valu("v_add_u32",t[4],sT0,L))
    a(salu("s_mul_i32",sT1,sW,5120)); a(salu("s_add_u32",sT1,sT1,DWB))
    for i in range(5):
        U,tp=t[5],t[6]
        a(valu("v_add_u32",U,64*i,t[4])); a(valu("v_mul_u32_u24",tp,0xa3e,U)); a(valu("v_lshrrev_b32",tp,16,tp))
        a(valu("v_sub_u32",U,U,tp)); a(valu("v_lshlrev_b32",t[10+i],4,U))
        a(salu("s_add_u32","m0",sT1,1024*i)); a(nop(0)); a(dma(t[10+i],SDW,0))
    a(salu("s_mov_b32","s26",294912)); a(salu("s_mov_b32","s27",0x20000))
    a(salu("s_mov_b32","s30",294912)); a(salu("s_mov_b32","s31",0x20000))
    a(salu("s_mov_b32","s34",XSZ)); a(salu("s_mov_b32","s35",0x20000))
    a(salu("s_lshr_b32",sPM,sW,1)); a(salu("s_and_b32",sHN,sW,1)); a(salu("s_xor_b32",sHH,sPM,sHN))
    a(salu("s_mov_b32",sNA,f32(-AA)))
    a(salu("s_mov_b32","s44",0xcccccccc)); a(salu("s_mov_b32","s45",0xcccccccc))
    cS,rp,g,g0,g1,l16=t[0],t[1],t[2],t[3],t[4],t[5]
    a(valu("v_and_b32",cS,3,L)); a(valu("v_bfe_u32",rp,L,2,2)); a(valu("v_lshrrev_b32",g,4,L))
    a(valu("v_and_b32",g0,1,g)); a(valu("v_lshrrev_b32",g1,5,L)); a(valu("v_lshlrev_b32",l16,4,L))
    lp=t[6]
    a(valu("v_mul_u32_u24",lp,20,g1)); a(valu("v_add_u32",lp,lp,g0)); a(valu("v_lshlrev_b32",lp,7,lp))
    a(salu("s_mul_i32",sT0,sW,12)); a(salu("s_mov_b32",sT2,-7)); a(salu("s_movk_i32",sT3,10240))
    for ti in range(3):
        P,Rr,j,b=t[7],t[8],t[9],t[15]
        a(valu("v_add_u32",P,sT0,cS))
        if ti: a(valu("v_add_u32",P,4*ti,P))
        a(valu("v_mul_u32_u24",Rr,0x2493,P)); a(valu("v_lshrrev_b32",Rr,16,Rr))
        a(valu("v_mad_i32_i24",j,Rr,sT2,P)); a(valu("v_add_u32",j,j,rp))
        a(valu("v_mad_u32_u24",b,Rr,sT3,lp)); a(valu("v_lshl_add_u32",b,j,8,b))
        a(valu("v_and_b32",j,7,j)); a(valu("v_lshl_add_u32",CB(ti,0),j,4,b))
        for u in range(1,8): a(valu("v_xor_b32",CB(ti,u),16*u,CB(ti,0)))
    j,b=t[9],t[15]
    a(valu("v_add_u32",j,6,rp)); a(valu("v_add_u32",b,6*10240,lp)); a(valu("v_lshl_add_u32",b,j,8,b))
    a(valu("v_and_b32",j,7,j)); a(valu("v_lshl_add_u32",b,j,4,b))
    a(salu("s_lshl_b32",sT1,sW,5)); a(valu("v_xor_b32",CB12(0),sT1,b)); a(valu("v_xor_b32",CB12(1),16,CB12(0)))
    oh,ow,jj,i0,tp=t[7],t[8],t[9],t[15],t[16]
    a(valu("v_lshrrev_b32",oh,1,cS)); a(valu("v_and_b32",ow,1,cS))
    a(valu("v_lshl_add_u32",jj,rp,1,g0)); a(valu("v_sub_u32",jj,jj,ow)); a(valu("v_sub_u32",i0,g1,oh))
    a(salu("s_movk_i32",sT3,400)); a(valu("v_mov_b32",t[18],DWB))
    for th in range(4):
        ii=t[17]
        a(valu("v_add_u32",ii,2*th,i0)); a(valu("v_mad_i32_i24",tp,ii,7,jj))
        a(valu("v_max_u32",ii,ii,jj)); a(valu("v_cmp_gt_u32","vcc",7,ii)); a(nop(1))
        a(valu("v_cndmask_b32",tp,49,tp,"vcc")); a(valu("v_mad_u32_u24",CA(th),tp,sT3,t[18]))
        a(valu("v_add_u32",CA12(th),sT1,CA(th)))
    a(salu("s_movk_i32",sT2,128))
    for k in range(13):
        a(salu("s_add_u32","m0",sM0X(k),5120)); a(nop(0)); a(dma(XV(k),SX,sT2,aux=XAUX))
    lam,up,x,y=t[7],t[8],t[9],t[15]
    a(valu("v_lshrrev_b32",lam,3,L)); a(valu("v_and_b32",up,7,L))
    a(valu("v_and_b32",x,3,lam)); a(valu("v_lshlrev_b32",x,2,x)); a(valu("v_add_u32",x,x,g1))
    a(valu("v_mul_u32_u24",x,1536,x))
    a(valu("v_lshlrev_b32",y,2,g0)); a(valu("v_xor_b32",y,y,up)); a(valu("v_lshl_add_u32",DW1,y,4,x))
    for k in range(3):
        a(valu("v_add_u32",x,64*k,L)); a(valu("v_mul_u32_u24",x,0xaab,x)); a(valu("v_bfe_u32",x,x,17,1))
        a(valu("v_lshlrev_b32",x,6,x)); a(valu("v_xor_b32",DW2(k),x,l16))
    a(salu("s_mul_i32",sW1O,sW,73728)); a(salu("s_mul_i32",sW2O,sW,6144))
    a(salu("s_add_u32",sM1,sW2O,W1BASE)); a(salu("s_mov_b32",sM2,sW2O))
    c+=w1_dma(0,flat=True)
    hb,pc,x,y,z=t[7],t[8],t[9],t[15],t[16]
    a(valu("v_lshrrev_b32",hb,1,rp))
    a(valu("v_lshl_add_u32",x,g1,2,rp))
    a(valu("v_xor_b32",y,sHH,hb)); a(valu("v_lshlrev_b32",y,6,y)); a(valu("v_lshl_add_u32",y,x,7,y))
    a(valu("v_lshl_add_u32",y,g0,5,y)); a(valu("v_lshl_add_u32",y,cS,3,y))
    a(salu("s_mul_i32",sT0,sPM,12288)); a(salu("s_add_u32",sT1,sT0,W1BASE)); a(salu("s_sub_u32",sT2,W1BASE,sT0))
    a(valu("v_add_u32",W1LO,sT1,y)); a(valu("v_add_u32",W1HI,sT2,y))
    a(valu("v_and_b32",pc,1,cS)); a(valu("v_lshlrev_b32",pc,1,pc)); a(valu("v_lshrrev_b32",z,1,cS)); a(valu("v_add_u32",pc,pc,z))
    a(valu("v_mul_u32_u24",y,384,x)); a(valu("v_lshl_add_u32",y,g0,5,y)); a(valu("v_lshl_add_u32",y,pc,3,y))
    a(salu("s_mul_i32",sT1,sHN,3))
    for lct in range(3):
        a(salu("s_add_u32",sT2,sT1,lct)); a(valu("v_xor_b32",z,sT2,hb)); a(valu("v_lshl_add_u32",z,z,6,y))
        a(valu("v_add_u32",W2A(lct,0),sT0,z))
        a(valu("v_subrev_u32",W2A(lct,1),sT0,z)); a(valu("v_add_u32",W2A(lct,1),12288,W2A(lct,1)))
    a(salu("s_add_u32",sT1,sT0,HBASE)); a(valu("v_add_u32",HR,sT1,l16))
    a(salu("s_lshl_b32",sT2,sHN,11)); a(valu("v_add_u32",HW,sT2,HR))
    a(salu("s_lshl_b32",sT1,sHH,1)); a(salu("s_add_u32",sT1,sT1,sPM)); a(salu("s_lshl_b32",sT1,sT1,10)); a(valu("v_add_u32",P12W,sT1,l16))
    a(valu("v_lshl_add_u32",x,g,2,cS)); a(valu("v_lshlrev_b32",x,4,x)); a(valu("v_lshl_add_u32",x,rp,2,x))
    a(salu("s_lshl_b32",sT1,sHH,11)); a(salu("s_lshl_b32",sT2,sPM,8)); a(salu("s_add_u32",sT1,sT1,sT2)); a(salu("s_add_u32",sT1,sT1,P12))
    a(valu("v_add_u32",P12R,sT1,x))
    a(valu("v_lshlrev_b32",x,6,g0)); a(valu("v_lshl_add_u32",x,cS,4,x)); a(valu("v_lshl_add_u32",x,g1,3,x)); a(valu("v_lshl_add_u32",x,rp,1,x))
    a(salu("s_lshl_b32",sT1,sHH,8)); a(salu("s_lshl_b32",sT2,sPM,7)); a(salu("s_add_u32",sT1,sT1,sT2)); a(salu("s_add_u32",sT1,sT1,H12))
    a(valu("v_add_u32",H12W,sT1,x))
    a(valu("v_lshlrev_b32",x,6,g1)); a(valu("v_lshl_add_u32",x,cS,4,x))
    a(salu("s_lshl_b32",sT1,sPM,8)); a(salu("s_add_u32",sT1,sT1,H12)); a(valu("v_add_u32",H12R,sT1,x))
    a(salu("s_mov_b32",sT2,-7)); a(salu("s_movk_i32",sT3,400)); a(salu("s_mul_i32",sT1,sHN,192))
    ch,oh,ow=t[17],t[18],t[19]
    a(valu("v_lshl_add_u32",ch,g1,4,sT1)); a(valu("v_lshrrev_b32",oh,1,rp)); a(valu("v_and_b32",ow,1,rp))
    a(salu("s_lshl_b32",sT0,sPM,3))
    for s in range(3):
        P,Rr,Cc=t[9],t[15],t[16]
        a(valu("v_lshl_add_u32",P,g0,2,cS)); a(valu("v_add_u32",P,sT0,P))
        if s: a(valu("v_add_u32",P,16*s,P))
        a(valu("v_mul_u32_u24",Rr,0x2493,P)); a(valu("v_lshrrev_b32",Rr,16,Rr)); a(valu("v_mad_i32_i24",Cc,Rr,sT2,P))
        a(valu("v_lshl_add_u32",Rr,Rr,1,oh)); a(valu("v_lshl_add_u32",Cc,Cc,1,ow))
        a(valu("v_mad_u32_u24",P,Rr,14,Cc)); a(valu("v_mad_u32_u24",P,P,sT3,ch)); a(valu("v_add_u32",OSW(s),OS,P))
        a(valu("v_mul_u32_u24",Rr,ROWB,Rr)); a(valu("v_mul_u32_u24",Cc,384,Cc)); a(valu("v_add3_u32",RESV(s),Rr,Cc,ch))
    for k in range(3):
        x=t[9]
        a(valu("v_add_u32",x,56*k,L)); a(valu("v_mul_u32_u24",t[15],0xaab,x)); a(valu("v_lshrrev_b32",t[15],16,t[15]))
        a(valu("v_add_u32",x,x,t[15])); a(valu("v_lshlrev_b32",x,4,x)); a(valu("v_add_u32",OSR(k),OS,x))
    a(valu("v_cmp_gt_u32","vcc",56,L)); a(valu("v_mov_b32",t[9],0x80000000)); a(nop(0)); a(valu("v_cndmask_b32",L16S,t[9],l16,"vcc"))
    lc,x,y=t[9],t[15],t[16]
    a(salu("s_lshl_b32",sT0,sPM,1)); a(valu("v_mov_b32",lc,sT0)); a(valu("v_cmp_gt_u32","vcc",32,L)); a(nop(1)); a(valu("v_cndmask_b32",lc,1,lc,"vcc"))
    a(valu("v_and_b32",x,0x1f0,l16)); a(valu("v_lshl_add_u32",x,lc,12,x)); a(salu("s_lshl_b32",sT0,sHN,11)); a(valu("v_add_u32",A12R,sT0,x))
    a(valu("v_lshl_add_u32",x,ow,1,oh)); a(valu("v_lshlrev_b32",x,3,x)); a(valu("v_lshl_add_u32",x,g0,5,x)); a(valu("v_lshl_add_u32",x,lc,6,x)); a(valu("v_add_u32",x,sT1,x))
    a(valu("v_lshrrev_b32",y,1,cS)); a(valu("v_and_b32",lc,1,cS))
    a(valu("v_mul_u32_u24",t[17],ROWB,y)); a(valu("v_mul_u32_u24",t[18],384,lc)); a(valu("v_add3_u32",R12V,t[17],t[18],x)); a(valu("v_add_u32",R12V,12*ROWB+12*384,R12V))
    a(valu("v_mad_u32_u24",y,y,14,lc)); a(valu("v_mad_u32_u24",y,y,sT3,x)); a(valu("v_add_u32",O12W,OS+(12*14+12)*400,y))
    key,val,x=t[9],t[15],t[16]
    a(valu("v_bfe_u32",key,L,3,2)); a(valu("v_lshlrev_b32",key,1,key)); a(valu("v_bfe_u32",x,L,1,1)); a(valu("v_add_u32",key,key,x))
    a(valu("v_and_b32",x,1,rp)); a(valu("v_xor_b32",x,x,g1)); a(valu("v_lshl_add_u32",key,x,4,key))
    a(valu("v_and_b32",x,1,L)); a(valu("v_lshlrev_b32",x,4,x)); a(valu("v_mov_b32",val,0x3f80)); a(valu("v_lshlrev_b32",val,x,val))
    for d in range(8):
        a(valu("v_cmp_eq_u32","vcc",d,key)); a(nop(1)); a(valu("v_cndmask_b32",x,0,val,"vcc")); a(valu("v_accvgpr_write_b32",A(240+d),x))
    a(salu("s_mov_b32","vcc_lo",0xaaaaaaaa)); a(salu("s_mov_b32","vcc_hi",0xaaaaaaaa))
    return c

def w1_dma(slot,flat=False):
    out=[]
    for i in range(6):
        m=salu("s_add_u32","m0",sM1,W1OFF[slot]+4096*(i//4)) if i%4==0 else None
        s=salu("s_add_u32",sT0,sW1O,(i>>1)*24576+(i&1)*3072-1024*(i%4))
        d=dma(DW1,SW1,sT0,off=1024*(i%4))
        out.append((m,s,d))
    adv=salu("s_add_u32",sW1O,sW1O,128)
    if flat: return [x for tr in out for x in tr if x is not None]+[adv]
    return out,adv
def w2_dma(slot):
    out=[]
    for i in range(6):
        m=salu("s_add_u32","m0",sM2,W2S[slot]+4096*(i//4)) if i%4==0 else None
        s=salu("s_add_u32",sW2O,sW2O,4096) if i==4 else None
        d=dma(DW2(i%3),SW2,sW2O,off=1024*(i%4))
        out.append((m,s,d))
    adv=salu("s_add_u32",sW2O,sW2O,24576-4096)
    return out,adv

TR="ds_read_b64_tr_b16"
def conv_chunk(ch,state):
    slot=(ch&1)*5120
    res=[]
    aq=[]
    a0=state["a"]
    for ql in range(16):
        q=16*ch+ql
        aq.append([dsr(TR,AR(a0+len(aq)).sub(2*th,2),CA(th),8*q) for th in range(4)])
        for ti in range(3): res.append((a0+len(aq)-1,CB(ti,ql>>1),ql&1,RES(ti,q)))
    for i in range(4):
        aq.append([dsr(TR,AR(a0+len(aq)).sub(2*th,2),CA12(th),8*(16*ch+i)) for th in range(4)])
        res.append((a0+len(aq)-1,CB12(i>>1),i&1,RES12(4*ch+i)))
    state["a"]=a0+len(aq)
    n=len(res); r0=state["r"]; state["r"]=r0+n
    def bl(r):
        ai,ad,half,_=res[r]
        return [dsr(TR,BR(r0+r).sub(2*th,2),ad,th*10240+slot+8*half) for th in range(4)]
    def sel(r):
        d=CD(r0+r); dst=res[r][3]
        return [valu("v_cndmask_b32",d.sub(0),d.sub(0),d.sub(1),"vcc"),valu("v_cndmask_b32",d.sub(2),d.sub(2),d.sub(3),"vcc"),
                valu("v_cndmask_b32",dst,d.sub(0),d.sub(2),MB1)]
    AH=NBR-1
    pre=aq[0]+aq[1]
    c=[]
    for r in range(min(AH,n)): c+=bl(r)
    anext=2; apend=[]
    for r in range(n):
        ai=res[r][0]; Af=AR(ai); Bf=BR(r0+r); d=CD(r0+r)
        nb=bl(r+AH) if r+AH<n else []
        if not apend and anext<len(aq) and anext-2<=ai-a0:
            apend=list(aq[anext]); anext+=1
        c.append(mfma(16,d,Af.sub(0,4),Bf.sub(0,4),0))
        c+=nb[:2]
        for _ in range(2 if r>=44 else 1):
            if apend: c.append(apend.pop(0))
        s=sel(r-2) if r>=2 else []
        c+=s[:2]
        c.append(mfma(16,d,Af.sub(4,4),Bf.sub(4,4),d))
        c+=nb[2:]
        for _ in range(2 if r>=44 else 1):
            if apend: c.append(apend.pop(0))
        c+=s[2:]
    assert anext==len(aq) and not apend
    tail=sel(n-2)+[nop(3)]+sel(n-1)
    return pre,c,tail

def conv_all():
    st={"a":0,"r":0}
    p0,c0,t0=conv_chunk(0,st); p1,c1,t1=conv_chunk(1,st); p2,c2,t2=conv_chunk(2,st)
    c=[wait(vm=19),barrier()]+p0+c0+p1+t0
    c+=[wait(vm=6,lgkm=8),barrier()]
    c.append(salu("s_movk_i32",sT2,256))
    x2=[]
    for k in range(13): x2+=[salu("s_mov_b32","m0",sM0X(k)),nop(0),dma(XV(k),SX,sT2,aux=XAUX)]
    c+=c1[:16]+x2+c1[16:]+p2+t1
    c+=[wait(vm=0),barrier()]+c2+t2
    return c

def pk(op,d,*srcs,mod=""): return valu(op,d,*srcs,mod=mod)
def layernorm():
    c=[]; a=c.append
    S=[V(48+2*i,2) for i in range(4)]; Q=[V(56+2*i,2) for i in range(4)]; RN=[V(64+2*i,2) for i in range(4)]
    def pair(i,q): return V(RES(i,q).n,2) if i<3 else V(RES12(q).n,2)
    def stats(tiles,nq):
        for q in range(0,nq,2):
            for i in tiles:
                x=pair(i,q)
                if q==0: a(pk("v_pk_mul_f32",Q[i],x,x))
                else: a(pk("v_pk_fma_f32",Q[i],x,x,Q[i]))
                if q==2: a(pk("v_pk_add_f32",S[i],pair(i,0),x))
                elif q>2: a(pk("v_pk_add_f32",S[i],S[i],x))
        for i in tiles:
            a(valu("v_add_f32",S[i].sub(0),S[i].sub(0),S[i].sub(1))); a(valu("v_add_f32",S[i].sub(1),Q[i].sub(0),Q[i].sub(1)))
        if len(tiles)==1: a(nop(1))
        for qp in ("[1,0,3,2]","[2,3,0,1]"):
            for i in tiles:
                for h in (0,1): a(valu("v_add_f32_dpp",S[i].sub(h),S[i].sub(h),S[i].sub(h),mod=f"quad_perm:{qp} row_mask:0xf bank_mask:0xf"))
            if len(tiles)==1: a(nop(1))
    t=[V(72+i) for i in range(24)]
    g=t[0]
    stats([3],12)
    a(valu("v_lshrrev_b32",g,4,L)); a(valu("v_lshlrev_b32",t[1],5,g)); a(valu("v_add_u32",t[1],ST12,t[1]))
    a(salu("s_lshl_b32",sT0,sW,3)); a(valu("v_add_u32",t[2],sT0,t[1]))
    a(dsw("ds_write_b64",t[2],S[3]))
    a(wait(lgkm=0)); a(barrier())
    PS=V(88,8)
    a(dsr("ds_read_b128",PS.sub(0,4),t[1])); a(dsr("ds_read_b128",PS.sub(4,4),t[1],16))
    c+=w1_dma(1,flat=True)
    stats([0,1,2],48)
    a(pk("v_pk_add_f32",PS.sub(0,2),PS.sub(0,2),PS.sub(2,2))); a(pk("v_pk_add_f32",PS.sub(4,2),PS.sub(4,2),PS.sub(6,2)))
    a(pk("v_pk_add_f32",S[3],PS.sub(0,2),PS.sub(4,2)))
    for i in range(4):
        a(valu("v_mul_f32",S[i].sub(0),f32(1/192),S[i].sub(0)))
    for i in range(4):
        a(valu("v_mul_f32",Q[i].sub(0),S[i].sub(0),S[i].sub(0)))
    a(salu("s_mov_b32",sT1,f32(1/192)))
    for i in range(4):
        x=valu("v_fma_f32",Q[i].sub(0),S[i].sub(1),sT1,Q[i].sub(0)); x.txt=x.txt.replace(f", {Q[i].sub(0)}",f", -{Q[i].sub(0)}"); a(x)
    for i in range(4): a(valu("v_max_f32",Q[i].sub(0),0,Q[i].sub(0)))
    for i in range(4): a(valu("v_add_f32",Q[i].sub(0),f32(1e-5),Q[i].sub(0)))
    for i in range(4): a(valu("v_rsq_f32",Q[i].sub(0),Q[i].sub(0)))
    for i in range(4): a(valu("v_mul_f32",RN[i].sub(0),sNA,Q[i].sub(0)))
    for i in range(4):
        x=valu("v_mul_f32_e64",RN[i].sub(1),S[i].sub(0),RN[i].sub(0)); x.txt=x.txt.replace(f", {S[i].sub(0)}",f", -{S[i].sub(0)}"); a(x)
    e,cc,n=t[3],t[4],t[5]
    a(valu("v_and_b32",e,3,L)); a(valu("v_lshrrev_b32",n,2,L))
    a(valu("v_lshlrev_b32",cc,1,e)); a(valu("v_xor_b32",n,n,cc)); a(valu("v_lshlrev_b32",n,4,n)); a(valu("v_lshl_add_u32",n,e,9,n))
    a(salu("s_mul_i32",sT0,sW,3))
    for ti in range(3):
        a(salu("s_add_u32",sT1,sT0,ti)); a(salu("s_lshr_b32",sT2,sT1,1)); a(salu("s_mul_i32",sT2,sT2,12288))
        a(salu("s_and_b32",sT1,sT1,1)); a(salu("s_lshl_b32",sT1,sT1,8)); a(salu("s_add_u32",sT1,sT1,sT2))
        a(valu("v_add_u32",t[6+ti],sT1,n))
    a(valu("v_lshlrev_b32",t[9],6,e)); a(valu("v_lshl_add_u32",t[9],g,4,t[9]))
    a(salu("s_lshl_b32",sT1,sPM,8)); a(salu("s_lshl_b32",sT2,sHN,3)); a(salu("s_add_u32",sT1,sT1,sT2)); a(salu("s_add_u32",sT1,sT1,X12B))
    a(valu("v_add_u32",t[9],sT1,t[9]))
    M="op_sel:[0,0,1] op_sel_hi:[1,0,1]"
    for kp in range(6):
        for ti in range(3):
            for q in range(8*kp,8*kp+8,2): a(pk("v_pk_fma_f32",pair(ti,q),pair(ti,q),RN[ti],RN[ti],mod=M))
            for j in range(4): a(valu("v_cvt_pk_bf16_f32",RES(ti,8*kp+j),RES(ti,8*kp+2*j),RES(ti,8*kp+2*j+1)))
        for ti in range(3): a(dsw("ds_write_b128",t[6+ti],V(RES(ti,8*kp).n,4),2048*kp))
    for q in range(0,12,2): a(pk("v_pk_fma_f32",pair(3,q),pair(3,q),RN[3],RN[3],mod=M))
    for ch in range(3):
        for j in range(2): a(valu("v_cvt_pk_bf16_f32",RES12(4*ch+j),RES12(4*ch+2*j),RES12(4*ch+2*j+1)))
    for ch in range(3): a(dsw("ds_write_b64",t[9],V(RES12(4*ch).n,2),512*ch))
    XA=[[t[10],t[11]],[t[12],t[13]]]; X12A=t[14]
    h2,n=t[3],t[4]
    a(valu("v_lshrrev_b32",h2,5,L)); a(valu("v_lshlrev_b32",n,1,h2)); a(valu("v_xor_b32",n,n,L)); a(valu("v_lshlrev_b32",n,4,n))
    a(salu("s_mul_i32",sT0,sPM,18432)); a(salu("s_mul_i32",sT1,sPM,6144))
    a(valu("v_add_u32",XA[0][0],sT0,n)); a(valu("v_add_u32",XA[0][1],sT1,n))
    a(valu("v_xor_b32",XA[1][0],64,XA[0][0])); a(valu("v_xor_b32",XA[1][1],64,XA[0][1]))
    a(valu("v_and_b32",n,3,L)); a(valu("v_lshlrev_b32",n,4,n)); a(valu("v_lshl_add_u32",n,h2,6,n))
    a(salu("s_mul_i32",sT0,sPM,768)); a(salu("s_add_u32",sT0,sT0,X12B)); a(valu("v_add_u32",X12A,sT0,n))
    for tl in range(9):
        for q in range(2):
            a(bload(4,resfrag(tl,q),RESV(tl//3),SX,sTB,off=64*(tl%3)+32*q))
    a(wait(lgkm=0)); a(barrier())
    return c,XA,X12A
def resfrag(tl,q):
    f=2*tl+q
    if f<10: return V(ACC(1,2).n+4*f,4)
    f-=10
    return A(216+4*f,4) if f<6 else A(248+4*(f-6),4)

def w1_reads(k,slot):
    return [dsr(TR,W1F(k).sub(2*rd,2),W1LO if k<6 else W1HI,(32*(k>>1)+16*rd+8*(k&1))*128+W1OFF[slot]) for rd in range(2)]
def w2_reads(dst,k,lct,slot):
    return [dsr(TR,dst.sub(2*rd,2),W2A(lct,k>>1),(16*k+8*rd)*384+W2S[slot]-(12288 if k>=2 else 0)) for rd in range(2)]

def gelu_group(src,gi,stg,extra=None):
    ts=[GT(4*(gi%2)+j) for j in range(4)]; xs=[src.sub(j) for j in range(4)]
    if extra: xs=xs+[extra[0]]; ts=ts+[extra[1]]
    n=len(xs); f=[]
    for j in range(n): f.append(valu("v_fmaak_f32",ts[j],xs[j],xs[j],f32(CC)))
    for j in range(n): f.append(valu("v_mul_f32",ts[j],ts[j],xs[j]))
    for j in range(n): f.append(valu("v_exp_f32",ts[j],ts[j]))
    for j in range(n): f.append(valu("v_fma_f32",ts[j],ts[j],sNA,sNA))
    for j in range(n): f.append(valu("v_rcp_f32",ts[j],ts[j]))
    for j in range(n): f.append(valu("v_mul_f32",ts[j],ts[j],xs[j]))
    f.append(valu("v_cvt_pk_bf16_f32",stg.sub(0),ts[0],ts[1])); f.append(valu("v_cvt_pk_bf16_f32",stg.sub(1),ts[2],ts[3]))
    if extra: f.append(valu("v_cvt_pk_bf16_f32",extra[1],extra[1],extra[1]))
    return f

class Op:
    def __init__(s,inst,lo=0,hi=10**6,then=None,pre=None): s.i=inst; s.lo=lo; s.hi=hi; s.then=then; s.pre=pre
def schedule(M,vs,mem,smalls,sal,memcap=2,tailmem=True):
    n=len(M); out=[]; vs=list(vs); mem=list(mem); smalls=list(smalls); rel=[]
    def rem(): return sum(o.i.cost+(o.then.i.cost if o.then else 0) for o in vs)+sum(o.i.cost for o in mem+rel+smalls)
    for g in range(n):
        budget=(rem()+8*(n-g))/(n-g)
        out.append(M[g]); acc=8
        for k,s in enumerate(sal.get(g,[])):
            out.append(s); acc+=4 if k else 0
        k=0
        for o in [o for o in rel if o.lo<=g]:
            out.append(o.i); acc+=o.i.cost; rel.remove(o); k+=1
        av=sorted([o for o in mem if o.lo<=g],key=lambda o:o.hi)
        for o in av:
            if k>=memcap and o.hi>g+1: break
            out.append(o.i); acc+=o.i.cost; mem.remove(o); k+=1
        sm=None
        if smalls and smalls[0].lo<=g: sm=smalls.pop(0); assert sm.hi>g,("small late",g,sm.i)
        for o in smalls: assert o.hi>g+0
        force=max([i for i,o in enumerate(vs) if o.hi<=g+1],default=-1)
        cnt=0
        def take():
            nonlocal acc,cnt
            o=vs.pop(0); out.append(o.i); acc+=o.i.cost; cnt+=1
            if o.then: o.then.lo=max(o.then.lo,g+1); rel.append(o.then)
        if sm:
            while vs and vs[0].lo<=g and acc<int(os.environ.get("SMT","32")): take()
            out.append(sm.i); acc+=4
            if sm.then: sm.then.lo=max(sm.then.lo,g+3); rel.append(sm.then)
            if vs and vs[0].lo<=g: take()
        while vs and vs[0].lo<=g and (cnt<=force or acc+vs[0].i.cost/2<=budget): take()
        assert cnt>force,("valu deadline",g)
    assert not smalls and not mem,(len(smalls),len(mem))
    for o in vs:
        out.append(o.i)
        if o.then: rel.append(o.then)
    for o in rel: out.append(o.i)
    return out

LEAD=4
def g1_block(s,buf): return [mfma(32,D(buf),W1F(k),XF(s,k),D(buf) if k else 0) for k in range(12)]
def interval(j):
    p=j%2; first=(j==0); last=(j==11)
    M=[]; pos={}
    g2=[]
    if not first:
        for k in range(4):
            for l in range(3):
                for s in range(3): g2.append(mfma(32,ACC(s,l),W2F(3*k+l),HF(3*k+s),ACC(s,l)))
        cuts=[12,24,36]
    else:
        for tl in range(9):
            for q in range(2): g2.append(mfma(32,ACC(tl//3,tl%3),IDF(q),resfrag(tl,q),ACC(tl//3,tl%3) if q else 0))
        cuts=[6,12,18]
    gi={}
    def addg2(a,b):
        for i in range(a,b): gi[i]=len(M); M.append(g2[i])
    pos["b1"]=len(M); M+=g1_block(1,1-p); pos["e1"]=len(M)
    addg2(0,cuts[0])
    pos["b2"]=len(M); M+=g1_block(2,p); pos["e2"]=len(M)
    addg2(cuts[0],cuts[1])
    if not last:
        pos["b0"]=len(M); M+=g1_block(0,1-p); pos["e0"]=len(M)
    addg2(cuts[1],cuts[2])
    n=len(M)
    mem=[]; smalls=[]; sal={}
    if not first:
        for ph in range(12):
            lo=0 if ph<4 else gi[3*(ph-4)+2]+(1 if ph-4<6 else 0)
            for x in w2_reads(W2F(ph),ph//3,ph%3,1-p): mem.append(Op(x,lo,gi[3*ph]-LEAD+1 if ph<4 else gi[3*ph]-2))
        for k in range(4):
            for s in range(3):
                lo=0 if k<2 else gi[9*(k-2)+6+s]
                mem.append(Op(dsr("ds_read_b128",HF(3*k+s),HR,HOFF[1-p]+(4*s+k)*1024),lo,gi[9*k+s]-LEAD+1))
        for k in range(2): mem.append(Op(dsr("ds_read_b128",H12F(k),H12R,512*(1-p)+128*k),0,gi[9*k]-LEAD+1))
        for ph in range(6):
            for h in range(2): smalls.append(Op(mfma(4,ACC12(ph%3),W2F(ph).sub(2*h,2),H12F(ph//3).sub(2*h,2),ACC12(ph%3)),gi[3*ph]+h-(1 if ph else 0),gi[3*ph+2]+1))
    for h in range(2):
        mem.append(Op(dsr("ds_read2st64_b32",T12T.sub(2*h,2),P12R,mod=f"offset0:{16*p+4*h} offset1:{16*p+4*h+2}"),0,4))
    if not last:
        for k in range(12):
            for x in w1_reads(k,1-p): mem.append(Op(x,pos["b2"]+k,pos["b0"]+k-LEAD+1))
        for k in range(6):
            for h in range(2):
                o=Op(mfma(4,D12,W1F(k).sub(2*h,2),X12F(k).sub(2*h,2),D12 if (k or h) else 0),pos["b0"]+k,n-3)
                if k==5 and h==1: o.then=Op(dsw("ds_write_b128",P12W,D12,P12+4096*(1-p)))
                smalls.append(o)
    lists=[]
    if not last: lists.append(w1_dma(p))
    lists.append(w2_dma(p))
    step=int(os.environ.get("DSTEP","4"))
    if first: step=max(2,step*3//4)
    g=1
    for tr,adv in lists:
        for m,s,d in tr:
            if m is not None: sal.setdefault(g-1,[]).append(m)
            if s is not None: sal.setdefault(g,[]).append(s)
            mem.append(Op(d,g,g+1)); g+=step
        sal.setdefault(g-step+1,[]).append(adv)
    vs=[]; gc=[1]
    def grp(s,buf,g,lo,hi,hb,extra=None):
        fr=g>>1; stg=STG(fr)
        ops=gelu_group(D(buf).sub(4*g,4),gc[0],stg.sub(2*(g&1),2),extra); gc[0]+=1
        o=[Op(x,lo,hi) for x in ops]
        k=-2 if extra else -1
        if g&1: o[k].then=Op(dsw("ds_write_b128",HW,stg,HOFF[hb]+(4*s+fr)*1024))
        if extra: o[-1].then=Op(dsw("ds_write_b16",H12W,extra[1],512*p))
        return o
    if first:
        for l in range(3):
            for h in range(2): vs.append(Op(valu("v_mov_b64",ACC12(l).sub(2*h,2),0)))
    vs+=grp(0,p,1,0,pos["b2"],p)
    vs+=[Op(valu("v_add_f32",T12T.sub(0),T12T.sub(0),T12T.sub(1)),4),Op(valu("v_add_f32",T12T.sub(2),T12T.sub(2),T12T.sub(3)),4),
         Op(valu("v_add_f32",T12T.sub(0),T12T.sub(0),T12T.sub(2)),4)]
    vs+=grp(0,p,2,0,pos["b2"],p,extra=(T12T.sub(0),T12T.sub(1)))
    vs+=grp(0,p,3,0,pos["b2"],p)
    for g_ in range(4): vs+=grp(1,1-p,g_,pos["e1"]+2,pos.get("b0",10**6),p)
    for g_ in range(4): vs+=grp(2,p,g_,pos["e2"]+2,(n-3) if not last else 10**6,p)
    if not last: vs+=grp(0,1-p,0,pos["e0"]+2,10**6,1-p)
    KO=os.environ.get("KO","").split(",")
    if "small" in KO: smalls=[]
    if "dma" in KO: mem=[o for o in mem if o.i.kind!="dma"]
    if "dsw" in KO:
        for o in vs+smalls: o.then=None
    if "dsr" in KO: mem=[o for o in mem if o.i.kind!="dsr"]
    XV_=int(os.environ.get("XVALU","0"))
    if XV_:
        v2=[]
        for k,o in enumerate(vs):
            v2.append(o)
            if k%3==0 and XV_>0: v2.append(Op(valu("v_mul_f32",V(108+k%4),V(1),V(2)),o.lo,o.hi)); XV_-=1
        vs=v2
    c=schedule(M,vs,mem,smalls,sal)
    return c

def pre_interval(XA,X12A):
    M=g1_block(0,0)
    def xr(s,k): return dsr("ds_read_b128",XF(s,k),XA[k&1][k>=6],2*s*12288+k*1024)
    c=[]
    for k in range(4): c+=w1_reads(k,0)+[xr(0,k)]
    mem=[]
    for k in range(4,12):
        for x in w1_reads(k,0)+[xr(0,k)]: mem.append(Op(x,0,k-3))
    for k in range(6): mem.append(Op(dsr("ds_read_b128",X12F(k),X12A,128*k),0,9))
    for s in (1,2):
        for k in range(12): mem.append(Op(xr(s,k),0,12))
    c+=schedule(M,[],mem,[],{},memcap=5)
    sm=[mfma(4,D12,W1F(k).sub(2*h,2),X12F(k).sub(2*h,2),D12 if (k or h) else 0) for k in range(6) for h in range(2)]
    gl=gelu_group(D(0).sub(0,4),0,STG(0).sub(0,2))
    c+=[sm[0],nop(1),sm[1],nop(1),sm[2],nop(1),sm[3],nop(1)]
    k=4
    for i,x in enumerate(gl):
        c.append(x)
        if i%2==1 and k<12: c.append(sm[k]); k+=1
    c.append(dsw("ds_write_b128",P12W,D12,P12))
    c+=[wait(vm=18,lgkm=0),barrier()]
    return c

def final():
    c=[]; a=c.append
    p=1
    def WF(k,l): return W1F(3*k+l)
    M=[]
    for s in range(3):
        for l in range(3):
            for k in range(4): M.append(mfma(32,ACC(s,l),WF(k,l),XF(0,4*s+k),ACC(s,l)))
    def hr(s,k): return dsr("ds_read_b128",XF(0,4*s+k),HR,HOFF[p]+(4*s+k)*1024)
    R12=V(108,2)
    for k in range(4): c+=w2_reads(WF(k,0),k,0,p)+[hr(0,k)]
    a(bload(2,R12,R12V,SX,sTB))
    mem=[]
    for l in (1,2):
        for k in range(4):
            for x in w2_reads(WF(k,l),k,l,p): mem.append(Op(x,0,max(1,4*l+k-3)))
    for k in range(2): mem.append(Op(dsr("ds_read_b128",H12F(k),H12R,512*p+128*k),0,3))
    for s in (1,2):
        for k in range(4): mem.append(Op(hr(s,k),0,9))
    smalls=[]
    for l in range(3):
        for k in range(2):
            for h in range(2):
                smalls.append(Op(mfma(4,ACC12(l),WF(k,l).sub(2*h,2),H12F(k).sub(2*h,2),ACC12(l)),5))
    A12W=V(110)
    vs=[Op(valu("v_lshlrev_b32",A12W,4,L)),Op(valu("v_add_u32",A12W,sT0,A12W))]
    sal={0:[salu("s_lshl_b32",sT0,sHN,1),salu("s_add_u32",sT0,sT0,sPM),salu("s_lshl_b32",sT0,sT0,10)]}
    for l in range(3): smalls[4*l+3].then=Op(dsw("ds_write_b128",A12W,ACC12(l),4096*l))
    def epi(s,l,lo):
        o=[]
        for q in range(2):
            r=ACC(s,l)
            for j in range(4): o.append(Op(valu("v_cvt_pk_bf16_f32",r.sub(8*q+j),r.sub(8*q+2*j),r.sub(8*q+2*j+1)),lo))
            o[-1].then=Op(dsw("ds_write_b128",OSW(s),r.sub(8*q,4),64*l+32*q))
        return o
    def stores(rows,tmp):
        o=[]
        return o
    for l in range(3): vs+=epi(0,l,4*l+4+3)
    c+=schedule(M[:20],vs,mem,smalls,sal,memcap=4)
    c+=[wait(lgkm=0),barrier()]
    SB=[V(48+4*i,4) for i in range(8)]
    sRow,sRow2="s70","s71"; RA=[V(32+i) for i in range(3)]
    def row_setup(r0):
        return [salu("s_add_u32",sT0,sW,r0),salu("s_mul_i32",sRow,sT0,ROWB),salu("s_add_u32",sRow,sRow,sTB),salu("s_add_u32",sRow2,sRow,2688),
                salu("s_mul_i32",sT0,sT0,5600)]+[valu("v_add_u32",RA[k],sT0,OSR(k)) for k in range(3)]
    def row_ops(b0):
        rd=[dsr("ds_read_b128",SB[(b0+k)%8],RA[k%3],2800*(k//3)) for k in range(6)]
        st=[bstore(4,SB[(b0+k)%8],L16S,SOUT,sRow if k<3 else sRow2,off=896*(k%3),aux=STAUX) for k in range(6)]
        return rd,st
    c+=row_setup(0)
    rd,st=row_ops(0)
    PT=V(84,16)
    mem=[Op(x,0,3) for x in rd]+[Op(x,3+i,4+i) for i,x in enumerate(st)]
    mem+=[Op(dsr("ds_read_b128",PT.sub(4*i,4),A12R,512*i),0,4) for i in range(4)]
    vs=[]
    for l in range(3): vs+=epi(1,l,max(0,12+4*l+4+3-20))
    t12=[]
    for j in range(4): t12.append(valu("v_add_f32",PT.sub(j),PT.sub(j),PT.sub(4+j)))
    for j in range(4): t12.append(valu("v_add_f32",PT.sub(8+j),PT.sub(8+j),PT.sub(12+j)))
    for j in range(4): t12.append(valu("v_add_f32",PT.sub(j),PT.sub(j),PT.sub(8+j)))
    for j in range(2):
        t12.append(valu("v_lshlrev_b32",PT.sub(4+2*j),16,R12.sub(j))); t12.append(valu("v_and_b32",PT.sub(5+2*j),0xffff0000,R12.sub(j)))
    for j in range(4): t12.append(valu("v_add_f32",PT.sub(j),PT.sub(j),PT.sub(4+j)))
    t12+=[valu("v_cvt_pk_bf16_f32",PT.sub(0),PT.sub(0),PT.sub(1)),valu("v_cvt_pk_bf16_f32",PT.sub(1),PT.sub(2),PT.sub(3))]
    t12=[Op(x,7) for x in t12]; t12[-1].then=Op(dsw("ds_write_b64",O12W,PT.sub(0,2)))
    vs+=t12
    c+=schedule(M[20:32],vs,mem,[],{},memcap=4)
    c+=[wait(lgkm=0),barrier()]
    c+=row_setup(4)
    rd,st=row_ops(6)
    mem=[Op(x,0,2) for x in rd]
    vs=epi(2,0,0)+epi(2,1,3)
    c+=schedule(M[32:36],vs,mem,[],{},memcap=4)
    c+=st
    for o in epi(2,2,0):
        c.append(o.i)
        if o.then: c.append(o.then.i)
    c+=[wait(lgkm=0),barrier()]
    c+=row_setup(8)
    rd,st=row_ops(4)
    c+=rd
    RB=[V(36+i) for i in range(3)]; sR3="s72"
    c+=[salu("s_mul_i32",sT0,sPM,ROWB),salu("s_mul_i32",sT1,sHN,2688),salu("s_add_u32",sR3,sT0,sT1),salu("s_add_u32",sR3,sR3,sTB),salu("s_add_u32",sR3,sR3,12*ROWB),
        salu("s_mul_i32",sT0,sW,2800),salu("s_add_u32",sT0,sT0,12*5600)]
    c+=[valu("v_add_u32",RB[k],sT0,OSR(k)) for k in range(3)]
    SC=[V(84+4*i,4) for i in range(3)]
    c+=[dsr("ds_read_b128",SC[k],RB[k]) for k in range(3)]
    c+=st
    c+=[bstore(4,SC[k],L16S,SOUT,sR3,off=896*k,aux=STAUX) for k in range(3)]
    return c

NST=[0]
def stamp():
    k=NST[0]; NST[0]+=1
    return [raw("s_memtime s[92:93]"),wait(lgkm=0),raw(f"s_sub_u32 s{74+k}, s92, s94")]
def add_stamps(code):
    out=[]
    for i in code:
        out.append(i)
        if i.kind=="barrier": out+=stamp()
    return out
def dump_stamps():
    c=[wait(vm=0)]+stamp()
    c+=[raw("s_memrealtime s[92:93]"),raw("s_load_dwordx2 s[4:5], s[0:1], 48"),wait(lgkm=0),raw(f"s_sub_u32 s{74+NST[0]}, s92, s95"),
        raw("s_mov_b32 s6, 0x1000000"),raw("s_mov_b32 s7, 0x20000"),raw("s_lshl_b32 s8, s2, 2"),raw(f"s_add_u32 s8, s8, {sW}"),raw("s_lshl_b32 s8, s8, 7"),raw("v_mov_b32 v1, s8")]
    for k in range(NST[0]+1):
        c+=[raw(f"v_mov_b32 v2, s{74+k}"),raw(f"buffer_store_dword v2, v1, s[4:7], 0 offen offset:{4*k}")]
    print("nstamps",NST[0]+1,file=sys.stderr)
    return c
def endint(): return [wait(vm=0,lgkm=0),barrier()]

def build():
    segs=[]
    pro=prologue(); cv=conv_all(); ln,XA,X12A=layernorm(); pre=pre_interval(XA,X12A)
    i0=interval(0)+endint()
    head=insert_waits(pro+cv+ln+pre+i0)
    i1=insert_waits(interval(1)+endint()); i2=insert_waits(interval(2)+[salu("s_sub_u32",sCNT,sCNT,1),salu("s_cmp_lg_u32",None,sCNT,0)]+endint())
    i11=insert_waits(interval(11)+endint()); fin=insert_waits(final())
    errs=check_hazards(head+i1+i2+i1+i2+i11+fin,"all")
    for e in errs[:40]: print(e,file=sys.stderr)
    for nm,s in (("pro",pro),("conv",insert_waits(cv)),("ln",ln),("pre",insert_waits(pre)),("i0",insert_waits(i0)),("i1",i1),("i2",i2),("i11",i11),("fin",fin)):
        print(f"{nm}: {len(s)} insts est {est_cycles(s)} cyc",file=sys.stderr)
    if DBG:
        st0=[raw("s_memtime s[92:93]"),raw("s_memrealtime s[90:91]"),wait(lgkm=0),raw("s_mov_b32 s94, s92"),raw("s_mov_b32 s95, s90")]
        head=head[:2]+st0+add_stamps(head[2:]); i11=stamp()+add_stamps(i11); fin=add_stamps(fin)+dump_stamps()
    code=head+[salu("s_mov_b32",sCNT,5),raw(".p2align 6","label",0),label("L_LOOP")]+i1+i2+[raw("s_cbranch_scc1 L_LOOP")]+i11+fin+[label("L_END")]
    return code,errs

HDR=open("standalone__convnext_block__vision.s.ref").read()
def emit(code,path):
    head=HDR[:HDR.index("; @launch")]
    s=head+"; @launch grid=(256,1,1) block=(256,1,1) lds=163840\n"
    s+='''.amdgcn_target "amdgcn-amd-amdhsa--gfx950"
.text
.globl standalone__convnext_block__vision_kernel
.p2align 8
.type standalone__convnext_block__vision_kernel,@function
standalone__convnext_block__vision_kernel:
'''
    for i in code: s+=("" if i.kind=="label" else "    ")+i.txt+"\n"
    s+='''s_endpgm
.section .rodata,"a"
.p2align 6
.amdhsa_kernel standalone__convnext_block__vision_kernel
  .amdhsa_next_free_vgpr 512
  .amdhsa_next_free_sgpr 96
  .amdhsa_accum_offset 256
  .amdhsa_group_segment_fixed_size 0
  .amdhsa_kernarg_size 56
  .amdhsa_user_sgpr_count 2
  .amdhsa_user_sgpr_kernarg_segment_ptr 1
  .amdhsa_system_sgpr_workgroup_id_x 1
.end_amdhsa_kernel
'''
    open(path,"w").write(s)
if __name__=="__main__":
    code,errs=build()
    out=sys.argv[1] if len(sys.argv)>1 else "standalone__convnext_block__vision.s"
    emit(code,out)
    print("hazard errors:",len(errs),file=sys.stderr)
```

```python
import struct, sys, math, os
from isa import *
def f32(x): return struct.unpack('<I', struct.pack('<f', x))[0]
K1=2*math.sqrt(2/math.pi)*math.log2(math.e); K3=K1*0.044715; AA=K3**(1/3); CC=K1/AA
ROWB=86016; XSZ=19267584
W2S=[0,24576]; P12=49152; H12=57344; HBASE=59392; HOFF=[24576,0]; W1BASE=114688; W1OFF=[24576,0]
OS=83968; DWB=102400; X12B=73728; ST12=98304; DUMMY=122880
L=V(0)
W1LO,W1HI=V(1),V(2)
def W2A(lct,hi): return V(3+2*lct+hi)
HW,HR,P12W,P12R,H12W,H12R=V(9),V(10),V(11),V(12),V(13),V(14)
DW1=V(15)
def DW2(k): return V(16+k)
def OSW(s): return V(19+s)
def RESV(s): return V(22+s)
def OSR(k): return V(25+k)
L16S=V(28); A12R,R12V,O12W=V(29),V(30),V(31)
def GT(i): return V(32+i)
def STG(b): return V(40+4*b,4)
def D(b): return V(48+16*b,16)
D12=V(80,4)
def ACC12(l): return V(84+4*l,4)
T12T=V(96,4)
def H12F(k): return V(100+4*k,4)
def ACC(s,l): return V(112+16*(3*s+l),16)
def XF(s,k): return A(48*s+4*k,4)
def W1F(k): return A(144+4*k,4)
def X12F(k): return A(192+4*k,4)
def HF(i): return A(216+4*(i%6),4)
def W2F(i): return A(240+4*(i%4),4)
def IDF(q): return A(240+4*q,4)
def RES(ti,q): return V(112+48*ti+q)
def RES12(k): return V(100+k)
def CD(i): return V(48+4*(i%4),4)
def CB(ti,u): return V(64+8*ti+u)
def CB12(i): return V(88+i)
def CA(th): return V(90+th)
def CA12(th): return V(94+th)
def XV(k): return V(32+k)
NBR=5
def BR(i): return A(8*(i%NBR),8)
def AR(i): return A(64+8*(i%3),8)
SX,SDW,SW1,SW2,SOUT="s[16:19]","s[20:23]","s[24:27]","s[28:31]","s[32:35]"
sW,sPM,sHN,sY0,sX0,sXB,sTB="s36","s37","s38","s39","s40","s41","s42"
sHH="s43"; MB1="s[44:45]"
def sM0X(k): return f"s{46+k}"
sCNT,sW1O,sW2O,sT0,sT1,sM1,sM2="s60","s61","s62","s63","s64","s65","s66"
sNA="s67"; sT2,sT3="s68","s69"
XAUX=os.environ.get("XAUX","nt")
STAUX=os.environ.get("STAUX","sc1")
DBG=os.environ.get("DBG","")

def prologue():
    c=[]; a=c.append
    a(salu("s_cmp_ge_u32",None,"s2",256)); a(raw("s_cbranch_scc1 L_END"))
    for i,r in enumerate((16,20,24,28,32)):
        a(I(f"s_load_dwordx2 s[{r}:{r+1}], s[0:1], {8*i}","salu"))
    t=[V(200+i) for i in range(40)]
    a(valu("v_lshrrev_b32",t[0],6,L))
    a(valu("v_lshrrev_b32",t[1],3,L))
    a(valu("v_readfirstlane_b32",sW,t[0],kind="rfl"))
    a(valu("v_and_b32",t[2],7,L))
    a(valu("v_and_b32",L,63,L))
    a(salu("s_lshr_b32",sY0,"s2",6))
    a(salu("s_lshl_b32",sT0,"s2",1)); a(salu("s_and_b32",sT0,sT0,12)); a(salu("s_add_u32",sY0,sY0,sT0))
    a(salu("s_bfe_u32",sX0,"s2",0x30003))
    a(salu("s_lshl_b32",sT0,"s2",3)); a(salu("s_and_b32",sT0,sT0,8)); a(salu("s_add_u32",sX0,sX0,sT0))
    a(salu("s_mul_i32",sY0,sY0,14)); a(salu("s_mul_i32",sX0,sX0,14))
    a(salu("s_mul_i32",sTB,sY0,ROWB)); a(salu("s_mul_i32",sT0,sX0,384)); a(salu("s_add_u32",sTB,sTB,sT0))
    a(salu("s_sub_u32",sXB,sTB,3*ROWB+3*384))
    a(salu("s_sub_u32",sX0,sX0,3))
    a(salu("s_mov_b32","s18",XSZ)); a(salu("s_mov_b32","s19",0x20000))
    a(salu("s_mov_b32",sT2,-20)); a(salu("s_movk_i32",sT3,384))
    a(valu("v_mov_b32",t[3],0x80000000))
    first=True
    for k in range(5):
        p,row,col,x,y=t[4],t[5],t[6],t[7],t[8]
        if k: a(valu("v_add_u32",p,32*k,t[1]))
        else: p=t[1]
        a(valu("v_mul_u32_u24",row,0xccd,p)); a(valu("v_lshrrev_b32",row,16,row))
        a(valu("v_mad_i32_i24",col,row,sT2,p))
        a(valu("v_add_u32",x,sX0,col)); a(valu("v_cmp_gt_u32","vcc",224,x))
        a(valu("v_bfe_u32",x,col,1,3)); a(valu("v_xor_b32",x,x,t[2]))
        a(valu("v_mul_u32_u24",y,ROWB,row)); a(valu("v_mad_u32_u24",y,col,sT3,y))
        a(valu("v_lshl_add_u32",y,x,4,y)); a(valu("v_add_u32",y,sXB,y))
        a(valu("v_cndmask_b32",XV(k),t[3],y,"vcc"))
        a(valu("v_add_u32",XV(k+5),8*ROWB,XV(k)))
        a(salu("s_add_u32",sT0,sW,4*k)); a(salu("s_mul_i32",sT1,sT0,205)); a(salu("s_lshr_b32",sT1,sT1,10))
        a(salu("s_mul_i32",sT1,sT1,5)); a(salu("s_add_u32",sT0,sT0,sT1)); a(salu("s_lshl_b32",sM0X(k),sT0,10))
        a(salu("s_add_u32",sM0X(k+5),sM0X(k),40960))
        if k<2:
            a(valu("v_add_u32",XV(k+10),16*ROWB,XV(k))); a(salu("s_add_u32",sM0X(k+10),sM0X(k),81920))
        if k==2:
            a(salu("s_cmp_lt_u32",None,sW,2))
            a(salu("s_cselect_b32",sT1,16*ROWB,0x40000000))
            a(salu("s_add_u32",sT0,sM0X(2),81920))
            a(salu("s_cmp_lt_u32",None,sW,2))
            a(salu("s_cselect_b32",sM0X(12),sT0,DUMMY))
            a(valu("v_add_u32",XV(12),sT1,XV(2)))
        if first: a(wait(lgkm=0)); first=False
        for kk in (k,k+5,k+10):
            if kk<=12:
                a(salu("s_mov_b32","m0",sM0X(kk))); a(nop(0)); a(dma(XV(kk),SX,0,aux=XAUX))
    a(salu("s_mov_b32","s22",18816)); a(salu("s_mov_b32","s23",0x20000))
    a(salu("s_mul_i32",sT0,sW,320)); a(valu("v_add_u32",t[4],sT0,L))
    a(salu("s_mul_i32",sT1,sW,5120)); a(salu("s_add_u32",sT1,sT1,DWB))
    for i in range(5):
        U,tp=t[5],t[6]
        a(valu("v_add_u32",U,64*i,t[4])); a(valu("v_mul_u32_u24",tp,0xa3e,U)); a(valu("v_lshrrev_b32",tp,16,tp))
        a(valu("v_sub_u32",U,U,tp)); a(valu("v_lshlrev_b32",t[10+i],4,U))
        a(salu("s_add_u32","m0",sT1,1024*i)); a(nop(0)); a(dma(t[10+i],SDW,0))
    a(salu("s_mov_b32","s26",294912)); a(salu("s_mov_b32","s27",0x20000))
    a(salu("s_mov_b32","s30",294912)); a(salu("s_mov_b32","s31",0x20000))
    a(salu("s_mov_b32","s34",XSZ)); a(salu("s_mov_b32","s35",0x20000))
    a(salu("s_lshr_b32",sPM,sW,1)); a(salu("s_and_b32",sHN,sW,1)); a(salu("s_xor_b32",sHH,sPM,sHN))
    a(salu("s_mov_b32",sNA,f32(-AA)))
    a(salu("s_mov_b32","s44",0xcccccccc)); a(salu("s_mov_b32","s45",0xcccccccc))
    cS,rp,g,g0,g1,l16=t[0],t[1],t[2],t[3],t[4],t[5]
    a(valu("v_and_b32",cS,3,L)); a(valu("v_bfe_u32",rp,L,2,2)); a(valu("v_lshrrev_b32",g,4,L))
    a(valu("v_and_b32",g0,1,g)); a(valu("v_lshrrev_b32",g1,5,L)); a(valu("v_lshlrev_b32",l16,4,L))
    lp=t[6]
    a(valu("v_mul_u32_u24",lp,20,g1)); a(valu("v_add_u32",lp,lp,g0)); a(valu("v_lshlrev_b32",lp,7,lp))
    a(salu("s_mul_i32",sT0,sW,12)); a(salu("s_mov_b32",sT2,-7)); a(salu("s_movk_i32",sT3,10240))
    for ti in range(3):
        P,Rr,j,b=t[7],t[8],t[9],t[15]
        a(valu("v_add_u32",P,sT0,cS))
        if ti: a(valu("v_add_u32",P,4*ti,P))
        a(valu("v_mul_u32_u24",Rr,0x2493,P)); a(valu("v_lshrrev_b32",Rr,16,Rr))
        a(valu("v_mad_i32_i24",j,Rr,sT2,P)); a(valu("v_add_u32",j,j,rp))
        a(valu("v_mad_u32_u24",b,Rr,sT3,lp)); a(valu("v_lshl_add_u32",b,j,8,b))
        a(valu("v_and_b32",j,7,j)); a(valu("v_lshl_add_u32",CB(ti,0),j,4,b))
        for u in range(1,8): a(valu("v_xor_b32",CB(ti,u),16*u,CB(ti,0)))
    j,b=t[9],t[15]
    a(valu("v_add_u32",j,6,rp)); a(valu("v_add_u32",b,6*10240,lp)); a(valu("v_lshl_add_u32",b,j,8,b))
    a(valu("v_and_b32",j,7,j)); a(valu("v_lshl_add_u32",b,j,4,b))
    a(salu("s_lshl_b32",sT1,sW,5)); a(valu("v_xor_b32",CB12(0),sT1,b)); a(valu("v_xor_b32",CB12(1),16,CB12(0)))
    oh,ow,jj,i0,tp=t[7],t[8],t[9],t[15],t[16]
    a(valu("v_lshrrev_b32",oh,1,cS)); a(valu("v_and_b32",ow,1,cS))
    a(valu("v_lshl_add_u32",jj,rp,1,g0)); a(valu("v_sub_u32",jj,jj,ow)); a(valu("v_sub_u32",i0,g1,oh))
    a(salu("s_movk_i32",sT3,400)); a(valu("v_mov_b32",t[18],DWB))
    for th in range(4):
        ii=t[17]
        a(valu("v_add_u32",ii,2*th,i0)); a(valu("v_mad_i32_i24",tp,ii,7,jj))
        a(valu("v_max_u32",ii,ii,jj)); a(valu("v_cmp_gt_u32","vcc",7,ii)); a(nop(1))
        a(valu("v_cndmask_b32",tp,49,tp,"vcc")); a(valu("v_mad_u32_u24",CA(th),tp,sT3,t[18]))
        a(valu("v_add_u32",CA12(th),sT1,CA(th)))
    a(salu("s_movk_i32",sT2,128))
    for k in range(13):
        a(salu("s_add_u32","m0",sM0X(k),5120)); a(nop(0)); a(dma(XV(k),SX,sT2,aux=XAUX))
    lam,up,x,y=t[7],t[8],t[9],t[15]
    a(valu("v_lshrrev_b32",lam,3,L)); a(valu("v_and_b32",up,7,L))
    a(valu("v_and_b32",x,3,lam)); a(valu("v_lshlrev_b32",x,2,x)); a(valu("v_add_u32",x,x,g1))
    a(valu("v_mul_u32_u24",x,1536,x))
    a(valu("v_lshlrev_b32",y,2,g0)); a(valu("v_xor_b32",y,y,up)); a(valu("v_lshl_add_u32",DW1,y,4,x))
    for k in range(3):
        a(valu("v_add_u32",x,64*k,L)); a(valu("v_mul_u32_u24",x,0xaab,x)); a(valu("v_bfe_u32",x,x,17,1))
        a(valu("v_lshlrev_b32",x,6,x)); a(valu("v_xor_b32",DW2(k),x,l16))
    a(salu("s_mul_i32",sW1O,sW,73728)); a(salu("s_mul_i32",sW2O,sW,6144))
    a(salu("s_add_u32",sM1,sW2O,W1BASE)); a(salu("s_mov_b32",sM2,sW2O))
    c+=w1_dma(0,flat=True)
    hb,pc,x,y,z=t[7],t[8],t[9],t[15],t[16]
    a(valu("v_lshrrev_b32",hb,1,rp))
    a(valu("v_lshl_add_u32",x,g1,2,rp))
    a(valu("v_xor_b32",y,sHH,hb)); a(valu("v_lshlrev_b32",y,6,y)); a(valu("v_lshl_add_u32",y,x,7,y))
    a(valu("v_lshl_add_u32",y,g0,5,y)); a(valu("v_lshl_add_u32",y,cS,3,y))
    a(salu("s_mul_i32",sT0,sPM,12288)); a(salu("s_add_u32",sT1,sT0,W1BASE)); a(salu("s_sub_u32",sT2,W1BASE,sT0))
    a(valu("v_add_u32",W1LO,sT1,y)); a(valu("v_add_u32",W1HI,sT2,y))
    a(valu("v_and_b32",pc,1,cS)); a(valu("v_lshlrev_b32",pc,1,pc)); a(valu("v_lshrrev_b32",z,1,cS)); a(valu("v_add_u32",pc,pc,z))
    a(valu("v_mul_u32_u24",y,384,x)); a(valu("v_lshl_add_u32",y,g0,5,y)); a(valu("v_lshl_add_u32",y,pc,3,y))
    a(salu("s_mul_i32",sT1,sHN,3))
    for lct in range(3):
        a(salu("s_add_u32",sT2,sT1,lct)); a(valu("v_xor_b32",z,sT2,hb)); a(valu("v_lshl_add_u32",z,z,6,y))
        a(valu("v_add_u32",W2A(lct,0),sT0,z))
        a(valu("v_subrev_u32",W2A(lct,1),sT0,z)); a(valu("v_add_u32",W2A(lct,1),12288,W2A(lct,1)))
    a(salu("s_add_u32",sT1,sT0,HBASE)); a(valu("v_add_u32",HR,sT1,l16))
    a(salu("s_lshl_b32",sT2,sHN,11)); a(valu("v_add_u32",HW,sT2,HR))
    a(salu("s_lshl_b32",sT1,sHH,1)); a(salu("s_add_u32",sT1,sT1,sPM)); a(salu("s_lshl_b32",sT1,sT1,10)); a(valu("v_add_u32",P12W,sT1,l16))
    a(valu("v_lshl_add_u32",x,g,2,cS)); a(valu("v_lshlrev_b32",x,4,x)); a(valu("v_lshl_add_u32",x,rp,2,x))
    a(salu("s_lshl_b32",sT1,sHH,11)); a(salu("s_lshl_b32",sT2,sPM,8)); a(salu("s_add_u32",sT1,sT1,sT2)); a(salu("s_add_u32",sT1,sT1,P12))
    a(valu("v_add_u32",P12R,sT1,x))
    a(valu("v_lshlrev_b32",x,6,g0)); a(valu("v_lshl_add_u32",x,cS,4,x)); a(valu("v_lshl_add_u32",x,g1,3,x)); a(valu("v_lshl_add_u32",x,rp,1,x))
    a(salu("s_lshl_b32",sT1,sHH,8)); a(salu("s_lshl_b32",sT2,sPM,7)); a(salu("s_add_u32",sT1,sT1,sT2)); a(salu("s_add_u32",sT1,sT1,H12))
    a(valu("v_add_u32",H12W,sT1,x))
    a(valu("v_lshlrev_b32",x,6,g1)); a(valu("v_lshl_add_u32",x,cS,4,x))
    a(salu("s_lshl_b32",sT1,sPM,8)); a(salu("s_add_u32",sT1,sT1,H12)); a(valu("v_add_u32",H12R,sT1,x))
    a(salu("s_mov_b32",sT2,-7)); a(salu("s_movk_i32",sT3,400)); a(salu("s_mul_i32",sT1,sHN,192))
    ch,oh,ow=t[17],t[18],t[19]
    a(valu("v_lshl_add_u32",ch,g1,4,sT1)); a(valu("v_lshrrev_b32",oh,1,rp)); a(valu("v_and_b32",ow,1,rp))
    a(salu("s_lshl_b32",sT0,sPM,3))
    for s in range(3):
        P,Rr,Cc=t[9],t[15],t[16]
        a(valu("v_lshl_add_u32",P,g0,2,cS)); a(valu("v_add_u32",P,sT0,P))
        if s: a(valu("v_add_u32",P,16*s,P))
        a(valu("v_mul_u32_u24",Rr,0x2493,P)); a(valu("v_lshrrev_b32",Rr,16,Rr)); a(valu("v_mad_i32_i24",Cc,Rr,sT2,P))
        a(valu("v_lshl_add_u32",Rr,Rr,1,oh)); a(valu("v_lshl_add_u32",Cc,Cc,1,ow))
        a(valu("v_mad_u32_u24",P,Rr,14,Cc)); a(valu("v_mad_u32_u24",P,P,sT3,ch)); a(valu("v_add_u32",OSW(s),OS,P))
        a(valu("v_mul_u32_u24",Rr,ROWB,Rr)); a(valu("v_mul_u32_u24",Cc,384,Cc)); a(valu("v_add3_u32",RESV(s),Rr,Cc,ch))
    for k in range(3):
        x=t[9]
        a(valu("v_add_u32",x,56*k,L)); a(valu("v_mul_u32_u24",t[15],0xaab,x)); a(valu("v_lshrrev_b32",t[15],16,t[15]))
        a(valu("v_add_u32",x,x,t[15])); a(valu("v_lshlrev_b32",x,4,x)); a(valu("v_add_u32",OSR(k),OS,x))
    a(valu("v_cmp_gt_u32","vcc",56,L)); a(valu("v_mov_b32",t[9],0x80000000)); a(nop(0)); a(valu("v_cndmask_b32",L16S,t[9],l16,"vcc"))
    lc,x,y=t[9],t[15],t[16]
    a(salu("s_lshl_b32",sT0,sPM,1)); a(valu("v_mov_b32",lc,sT0)); a(valu("v_cmp_gt_u32","vcc",32,L)); a(nop(1)); a(valu("v_cndmask_b32",lc,1,lc,"vcc"))
    a(valu("v_and_b32",x,0x1f0,l16)); a(valu("v_lshl_add_u32",x,lc,12,x)); a(salu("s_lshl_b32",sT0,sHN,11)); a(valu("v_add_u32",A12R,sT0,x))
    a(valu("v_lshl_add_u32",x,ow,1,oh)); a(valu("v_lshlrev_b32",x,3,x)); a(valu("v_lshl_add_u32",x,g0,5,x)); a(valu("v_lshl_add_u32",x,lc,6,x)); a(valu("v_add_u32",x,sT1,x))
    a(valu("v_lshrrev_b32",y,1,cS)); a(valu("v_and_b32",lc,1,cS))
    a(valu("v_mul_u32_u24",t[17],ROWB,y)); a(valu("v_mul_u32_u24",t[18],384,lc)); a(valu("v_add3_u32",R12V,t[17],t[18],x)); a(valu("v_add_u32",R12V,12*ROWB+12*384,R12V))
    a(valu("v_mad_u32_u24",y,y,14,lc)); a(valu("v_mad_u32_u24",y,y,sT3,x)); a(valu("v_add_u32",O12W,OS+(12*14+12)*400,y))
    key,val,x=t[9],t[15],t[16]
    a(valu("v_bfe_u32",key,L,3,2)); a(valu("v_lshlrev_b32",key,1,key)); a(valu("v_bfe_u32",x,L,1,1)); a(valu("v_add_u32",key,key,x))
    a(valu("v_and_b32",x,1,rp)); a(valu("v_xor_b32",x,x,g1)); a(valu("v_lshl_add_u32",key,x,4,key))
    a(valu("v_and_b32",x,1,L)); a(valu("v_lshlrev_b32",x,4,x)); a(valu("v_mov_b32",val,0x3f80)); a(valu("v_lshlrev_b32",val,x,val))
    for d in range(8):
        a(valu("v_cmp_eq_u32","vcc",d,key)); a(nop(1)); a(valu("v_cndmask_b32",x,0,val,"vcc")); a(valu("v_accvgpr_write_b32",A(240+d),x))
    a(salu("s_mov_b32","vcc_lo",0xaaaaaaaa)); a(salu("s_mov_b32","vcc_hi",0xaaaaaaaa))
    return c

def w1_dma(slot,flat=False):
    out=[]
    for i in range(6):
        m=salu("s_add_u32","m0",sM1,W1OFF[slot]+4096*(i//4)) if i%4==0 else None
        s=salu("s_add_u32",sT0,sW1O,(i>>1)*24576+(i&1)*3072-1024*(i%4))
        d=dma(DW1,SW1,sT0,off=1024*(i%4))
        out.append((m,s,d))
    adv=salu("s_add_u32",sW1O,sW1O,128)
    if flat: return [x for tr in out for x in tr if x is not None]+[adv]
    return out,adv
def w2_dma(slot):
    out=[]
    for i in range(6):
        m=salu("s_add_u32","m0",sM2,W2S[slot]+4096*(i//4)) if i%4==0 else None
        s=salu("s_add_u32",sW2O,sW2O,4096) if i==4 else None
        d=dma(DW2(i%3),SW2,sW2O,off=1024*(i%4))
        out.append((m,s,d))
    adv=salu("s_add_u32",sW2O,sW2O,24576-4096)
    return out,adv

TR="ds_read_b64_tr_b16"
def conv_chunk(ch,state):
    slot=(ch&1)*5120
    res=[]
    aq=[]
    a0=state["a"]
    for ql in range(16):
        q=16*ch+ql
        aq.append([dsr(TR,AR(a0+len(aq)).sub(2*th,2),CA(th),8*q) for th in range(4)])
        for ti in range(3): res.append((a0+len(aq)-1,CB(ti,ql>>1),ql&1,RES(ti,q)))
    for i in range(4):
        aq.append([dsr(TR,AR(a0+len(aq)).sub(2*th,2),CA12(th),8*(16*ch+i)) for th in range(4)])
        res.append((a0+len(aq)-1,CB12(i>>1),i&1,RES12(4*ch+i)))
    state["a"]=a0+len(aq)
    n=len(res); r0=state["r"]; state["r"]=r0+n
    def bl(r):
        ai,ad,half,_=res[r]
        return [dsr(TR,BR(r0+r).sub(2*th,2),ad,th*10240+slot+8*half) for th in range(4)]
    def sel(r):
        d=CD(r0+r); dst=res[r][3]
        return [valu("v_cndmask_b32",d.sub(0),d.sub(0),d.sub(1),"vcc"),valu("v_cndmask_b32",d.sub(2),d.sub(2),d.sub(3),"vcc"),
                valu("v_cndmask_b32",dst,d.sub(0),d.sub(2),MB1)]
    AH=NBR-1
    pre=aq[0]+aq[1]
    c=[]
    for r in range(min(AH,n)): c+=bl(r)
    anext=2; apend=[]
    for r in range(n):
        ai=res[r][0]; Af=AR(ai); Bf=BR(r0+r); d=CD(r0+r)
        nb=bl(r+AH) if r+AH<n else []
        if not apend and anext<len(aq) and anext-2<=ai-a0:
            apend=list(aq[anext]); anext+=1
        c.append(mfma(16,d,Af.sub(0,4),Bf.sub(0,4),0))
        c+=nb[:2]
        for _ in range(2 if r>=44 else 1):
            if apend: c.append(apend.pop(0))
        s=sel(r-2) if r>=2 else []
        c+=s[:2]
        c.append(mfma(16,d,Af.sub(4,4),Bf.sub(4,4),d))
        c+=nb[2:]
        for _ in range(2 if r>=44 else 1):
            if apend: c.append(apend.pop(0))
        c+=s[2:]
    assert anext==len(aq) and not apend
    tail=sel(n-2)+[nop(3)]+sel(n-1)
    return pre,c,tail

def conv_all():
    st={"a":0,"r":0}
    p0,c0,t0=conv_chunk(0,st); p1,c1,t1=conv_chunk(1,st); p2,c2,t2=conv_chunk(2,st)
    c=[wait(vm=19),barrier()]+p0+c0+p1+t0
    c+=[wait(vm=6,lgkm=8),barrier()]
    c.append(salu("s_movk_i32",sT2,256))
    x2=[]
    for k in range(13): x2+=[salu("s_mov_b32","m0",sM0X(k)),nop(0),dma(XV(k),SX,sT2,aux=XAUX)]
    c+=c1[:16]+x2+c1[16:]+p2+t1
    c+=[wait(vm=0),barrier()]+c2+t2
    return c

def pk(op,d,*srcs,mod=""): return valu(op,d,*srcs,mod=mod)
def layernorm():
    c=[]; a=c.append
    S=[V(48+2*i,2) for i in range(4)]; Q=[V(56+2*i,2) for i in range(4)]; RN=[V(64+2*i,2) for i in range(4)]
    def pair(i,q): return V(RES(i,q).n,2) if i<3 else V(RES12(q).n,2)
    def stats(tiles,nq):
        for q in range(0,nq,2):
            for i in tiles:
                x=pair(i,q)
                if q==0: a(pk("v_pk_mul_f32",Q[i],x,x))
                else: a(pk("v_pk_fma_f32",Q[i],x,x,Q[i]))
                if q==2: a(pk("v_pk_add_f32",S[i],pair(i,0),x))
                elif q>2: a(pk("v_pk_add_f32",S[i],S[i],x))
        for i in tiles:
            a(valu("v_add_f32",S[i].sub(0),S[i].sub(0),S[i].sub(1))); a(valu("v_add_f32",S[i].sub(1),Q[i].sub(0),Q[i].sub(1)))
        if len(tiles)==1: a(nop(1))
        for qp in ("[1,0,3,2]","[2,3,0,1]"):
            for i in tiles:
                for h in (0,1): a(valu("v_add_f32_dpp",S[i].sub(h),S[i].sub(h),S[i].sub(h),mod=f"quad_perm:{qp} row_mask:0xf bank_mask:0xf"))
            if len(tiles)==1: a(nop(1))
    t=[V(72+i) for i in range(24)]
    g=t[0]
    stats([3],12)
    a(valu("v_lshrrev_b32",g,4,L)); a(valu("v_lshlrev_b32",t[1],5,g)); a(valu("v_add_u32",t[1],ST12,t[1]))
    a(salu("s_lshl_b32",sT0,sW,3)); a(valu("v_add_u32",t[2],sT0,t[1]))
    a(dsw("ds_write_b64",t[2],S[3]))
    a(wait(lgkm=0)); a(barrier())
    PS=V(88,8)
    a(dsr("ds_read_b128",PS.sub(0,4),t[1])); a(dsr("ds_read_b128",PS.sub(4,4),t[1],16))
    c+=w1_dma(1,flat=True)
    stats([0,1,2],48)
    a(pk("v_pk_add_f32",PS.sub(0,2),PS.sub(0,2),PS.sub(2,2))); a(pk("v_pk_add_f32",PS.sub(4,2),PS.sub(4,2),PS.sub(6,2)))
    a(pk("v_pk_add_f32",S[3],PS.sub(0,2),PS.sub(4,2)))
    for i in range(4):
        a(valu("v_mul_f32",S[i].sub(0),f32(1/192),S[i].sub(0)))
    for i in range(4):
        a(valu("v_mul_f32",Q[i].sub(0),S[i].sub(0),S[i].sub(0)))
    a(salu("s_mov_b32",sT1,f32(1/192)))
    for i in range(4):
        x=valu("v_fma_f32",Q[i].sub(0),S[i].sub(1),sT1,Q[i].sub(0)); x.txt=x.txt.replace(f", {Q[i].sub(0)}",f", -{Q[i].sub(0)}"); a(x)
    for i in range(4): a(valu("v_max_f32",Q[i].sub(0),0,Q[i].sub(0)))
    for i in range(4): a(valu("v_add_f32",Q[i].sub(0),f32(1e-5),Q[i].sub(0)))
    for i in range(4): a(valu("v_rsq_f32",Q[i].sub(0),Q[i].sub(0)))
    for i in range(4): a(valu("v_mul_f32",RN[i].sub(0),sNA,Q[i].sub(0)))
    for i in range(4):
        x=valu("v_mul_f32_e64",RN[i].sub(1),S[i].sub(0),RN[i].sub(0)); x.txt=x.txt.replace(f", {S[i].sub(0)}",f", -{S[i].sub(0)}"); a(x)
    e,cc,n=t[3],t[4],t[5]
    a(valu("v_and_b32",e,3,L)); a(valu("v_lshrrev_b32",n,2,L))
    a(valu("v_lshlrev_b32",cc,1,e)); a(valu("v_xor_b32",n,n,cc)); a(valu("v_lshlrev_b32",n,4,n)); a(valu("v_lshl_add_u32",n,e,9,n))
    a(salu("s_mul_i32",sT0,sW,3))
    for ti in range(3):
        a(salu("s_add_u32",sT1,sT0,ti)); a(salu("s_lshr_b32",sT2,sT1,1)); a(salu("s_mul_i32",sT2,sT2,12288))
        a(salu("s_and_b32",sT1,sT1,1)); a(salu("s_lshl_b32",sT1,sT1,8)); a(salu("s_add_u32",sT1,sT1,sT2))
        a(valu("v_add_u32",t[6+ti],sT1,n))
    a(valu("v_lshlrev_b32",t[9],6,e)); a(valu("v_lshl_add_u32",t[9],g,4,t[9]))
    a(salu("s_lshl_b32",sT1,sPM,8)); a(salu("s_lshl_b32",sT2,sHN,3)); a(salu("s_add_u32",sT1,sT1,sT2)); a(salu("s_add_u32",sT1,sT1,X12B))
    a(valu("v_add_u32",t[9],sT1,t[9]))
    M="op_sel:[0,0,1] op_sel_hi:[1,0,1]"
    for kp in range(6):
        for ti in range(3):
            for q in range(8*kp,8*kp+8,2): a(pk("v_pk_fma_f32",pair(ti,q),pair(ti,q),RN[ti],RN[ti],mod=M))
            for j in range(4): a(valu("v_cvt_pk_bf16_f32",RES(ti,8*kp+j),RES(ti,8*kp+2*j),RES(ti,8*kp+2*j+1)))
        for ti in range(3): a(dsw("ds_write_b128",t[6+ti],V(RES(ti,8*kp).n,4),2048*kp))
    for q in range(0,12,2): a(pk("v_pk_fma_f32",pair(3,q),pair(3,q),RN[3],RN[3],mod=M))
    for ch in range(3):
        for j in range(2): a(valu("v_cvt_pk_bf16_f32",RES12(4*ch+j),RES12(4*ch+2*j),RES12(4*ch+2*j+1)))
    for ch in range(3): a(dsw("ds_write_b64",t[9],V(RES12(4*ch).n,2),512*ch))
    XA=[[t[10],t[11]],[t[12],t[13]]]; X12A=t[14]
    h2,n=t[3],t[4]
    a(valu("v_lshrrev_b32",h2,5,L)); a(valu("v_lshlrev_b32",n,1,h2)); a(valu("v_xor_b32",n,n,L)); a(valu("v_lshlrev_b32",n,4,n))
    a(salu("s_mul_i32",sT0,sPM,18432)); a(salu("s_mul_i32",sT1,sPM,6144))
    a(valu("v_add_u32",XA[0][0],sT0,n)); a(valu("v_add_u32",XA[0][1],sT1,n))
    a(valu("v_xor_b32",XA[1][0],64,XA[0][0])); a(valu("v_xor_b32",XA[1][1],64,XA[0][1]))
    a(valu("v_and_b32",n,3,L)); a(valu("v_lshlrev_b32",n,4,n)); a(valu("v_lshl_add_u32",n,h2,6,n))
    a(salu("s_mul_i32",sT0,sPM,768)); a(salu("s_add_u32",sT0,sT0,X12B)); a(valu("v_add_u32",X12A,sT0,n))
    for tl in range(9):
        for q in range(2):
            a(bload(4,resfrag(tl,q),RESV(tl//3),SX,sTB,off=64*(tl%3)+32*q))
    a(wait(lgkm=0)); a(barrier())
    return c,XA,X12A
def resfrag(tl,q):
    f=2*tl+q
    if f<10: return V(ACC(1,2).n+4*f,4)
    f-=10
    return A(216+4*f,4) if f<6 else A(248+4*(f-6),4)

def w1_reads(k,slot):
    return [dsr(TR,W1F(k).sub(2*rd,2),W1LO if k<6 else W1HI,(32*(k>>1)+16*rd+8*(k&1))*128+W1OFF[slot]) for rd in range(2)]
def w2_reads(dst,k,lct,slot):
    return [dsr(TR,dst.sub(2*rd,2),W2A(lct,k>>1),(16*k+8*rd)*384+W2S[slot]-(12288 if k>=2 else 0)) for rd in range(2)]

def gelu_group(src,gi,stg,extra=None):
    ts=[GT(4*(gi%2)+j) for j in range(4)]; xs=[src.sub(j) for j in range(4)]
    if extra: xs=xs+[extra[0]]; ts=ts+[extra[1]]
    n=len(xs); f=[]
    for j in range(n): f.append(valu("v_fmaak_f32",ts[j],xs[j],xs[j],f32(CC)))
    for j in range(n): f.append(valu("v_mul_f32",ts[j],ts[j],xs[j]))
    for j in range(n): f.append(valu("v_exp_f32",ts[j],ts[j]))
    for j in range(n): f.append(valu("v_fma_f32",ts[j],ts[j],sNA,sNA))
    for j in range(n): f.append(valu("v_rcp_f32",ts[j],ts[j]))
    for j in range(n): f.append(valu("v_mul_f32",ts[j],ts[j],xs[j]))
    f.append(valu("v_cvt_pk_bf16_f32",stg.sub(0),ts[0],ts[1])); f.append(valu("v_cvt_pk_bf16_f32",stg.sub(1),ts[2],ts[3]))
    if extra: f.append(valu("v_cvt_pk_bf16_f32",extra[1],extra[1],extra[1]))
    return f

class Op:
    def __init__(s,inst,lo=0,hi=10**6,then=None,pre=None): s.i=inst; s.lo=lo; s.hi=hi; s.then=then; s.pre=pre
def schedule(M,vs,mem,smalls,sal,memcap=2,tailmem=True):
    n=len(M); out=[]; vs=list(vs); mem=list(mem); smalls=list(smalls); rel=[]
    def rem(): return sum(o.i.cost+(o.then.i.cost if o.then else 0) for o in vs)+sum(o.i.cost for o in mem+rel+smalls)
    for g in range(n):
        budget=(rem()+8*(n-g))/(n-g)
        out.append(M[g]); acc=8
        for k,s in enumerate(sal.get(g,[])):
            out.append(s); acc+=4 if k else 0
        k=0
        for o in [o for o in rel if o.lo<=g]:
            out.append(o.i); acc+=o.i.cost; rel.remove(o); k+=1
        av=sorted([o for o in mem if o.lo<=g],key=lambda o:o.hi)
        for o in av:
            if k>=memcap and o.hi>g+1: break
            out.append(o.i); acc+=o.i.cost; mem.remove(o); k+=1
        sm=None
        if smalls and smalls[0].lo<=g: sm=smalls.pop(0); assert sm.hi>g,("small late",g,sm.i)
        for o in smalls: assert o.hi>g+0
        force=max([i for i,o in enumerate(vs) if o.hi<=g+1],default=-1)
        cnt=0
        def take():
            nonlocal acc,cnt
            o=vs.pop(0); out.append(o.i); acc+=o.i.cost; cnt+=1
            if o.then: o.then.lo=max(o.then.lo,g+1); rel.append(o.then)
        if sm:
            while vs and vs[0].lo<=g and acc<int(os.environ.get("SMT","32")): take()
            out.append(sm.i); acc+=4
            if sm.then: sm.then.lo=max(sm.then.lo,g+3); rel.append(sm.then)
            if vs and vs[0].lo<=g: take()
        while vs and vs[0].lo<=g and (cnt<=force or acc+vs[0].i.cost/2<=budget): take()
        assert cnt>force,("valu deadline",g)
    assert not smalls and not mem,(len(smalls),len(mem))
    for o in vs:
        out.append(o.i)
        if o.then: rel.append(o.then)
    for o in rel: out.append(o.i)
    return out

LEAD=4
def g1_block(s,buf): return [mfma(32,D(buf),W1F(k),XF(s,k),D(buf) if k else 0) for k in range(12)]
def interval(j):
    p=j%2; first=(j==0); last=(j==11)
    M=[]; pos={}
    g2=[]
    if not first:
        for k in range(4):
            for l in range(3):
                for s in range(3): g2.append(mfma(32,ACC(s,l),W2F(3*k+l),HF(3*k+s),ACC(s,l)))
        cuts=[12,24,36]
    else:
        for tl in range(9):
            for q in range(2): g2.append(mfma(32,ACC(tl//3,tl%3),IDF(q),resfrag(tl,q),ACC(tl//3,tl%3) if q else 0))
        cuts=[6,12,18]
    gi={}
    def addg2(a,b):
        for i in range(a,b): gi[i]=len(M); M.append(g2[i])
    pos["b1"]=len(M); M+=g1_block(1,1-p); pos["e1"]=len(M)
    addg2(0,cuts[0])
    pos["b2"]=len(M); M+=g1_block(2,p); pos["e2"]=len(M)
    addg2(cuts[0],cuts[1])
    if not last:
        pos["b0"]=len(M); M+=g1_block(0,1-p); pos["e0"]=len(M)
    addg2(cuts[1],cuts[2])
    n=len(M)
    mem=[]; smalls=[]; sal={}
    if not first:
        for ph in range(12):
            lo=0 if ph<4 else gi[3*(ph-4)+2]+(1 if ph-4<6 else 0)
            for x in w2_reads(W2F(ph),ph//3,ph%3,1-p): mem.append(Op(x,lo,gi[3*ph]-LEAD+1 if ph<4 else gi[3*ph]-2))
        for k in range(4):
            for s in range(3):
                lo=0 if k<2 else gi[9*(k-2)+6+s]
                mem.append(Op(dsr("ds_read_b128",HF(3*k+s),HR,HOFF[1-p]+(4*s+k)*1024),lo,gi[9*k+s]-LEAD+1))
        for k in range(2): mem.append(Op(dsr("ds_read_b128",H12F(k),H12R,512*(1-p)+128*k),0,gi[9*k]-LEAD+1))
        for ph in range(6):
            for h in range(2): smalls.append(Op(mfma(4,ACC12(ph%3),W2F(ph).sub(2*h,2),H12F(ph//3).sub(2*h,2),ACC12(ph%3)),gi[3*ph]+h-(1 if ph else 0),gi[3*ph+2]+1))
    for h in range(2):
        mem.append(Op(dsr("ds_read2st64_b32",T12T.sub(2*h,2),P12R,mod=f"offset0:{16*p+4*h} offset1:{16*p+4*h+2}"),0,4))
    if not last:
        for k in range(12):
            for x in w1_reads(k,1-p): mem.append(Op(x,pos["b2"]+k,pos["b0"]+k-LEAD+1))
        for k in range(6):
            for h in range(2):
                o=Op(mfma(4,D12,W1F(k).sub(2*h,2),X12F(k).sub(2*h,2),D12 if (k or h) else 0),pos["b0"]+k,n-3)
                if k==5 and h==1: o.then=Op(dsw("ds_write_b128",P12W,D12,P12+4096*(1-p)))
                smalls.append(o)
    lists=[]
    if not last: lists.append(w1_dma(p))
    lists.append(w2_dma(p))
    step=int(os.environ.get("DSTEP","4"))
    if first: step=max(2,step*3//4)
    g=1
    for tr,adv in lists:
        for m,s,d in tr:
            if m is not None: sal.setdefault(g-1,[]).append(m)
            if s is not None: sal.setdefault(g,[]).append(s)
            mem.append(Op(d,g,g+1)); g+=step
        sal.setdefault(g-step+1,[]).append(adv)
    vs=[]; gc=[1]
    def grp(s,buf,g,lo,hi,hb,extra=None):
        fr=g>>1; stg=STG(fr)
        ops=gelu_group(D(buf).sub(4*g,4),gc[0],stg.sub(2*(g&1),2),extra); gc[0]+=1
        o=[Op(x,lo,hi) for x in ops]
        k=-2 if extra else -1
        if g&1: o[k].then=Op(dsw("ds_write_b128",HW,stg,HOFF[hb]+(4*s+fr)*1024))
        if extra: o[-1].then=Op(dsw("ds_write_b16",H12W,extra[1],512*p))
        return o
    if first:
        for l in range(3):
            for h in range(2): vs.append(Op(valu("v_mov_b64",ACC12(l).sub(2*h,2),0)))
    vs+=grp(0,p,1,0,pos["b2"],p)
    vs+=[Op(valu("v_add_f32",T12T.sub(0),T12T.sub(0),T12T.sub(1)),4),Op(valu("v_add_f32",T12T.sub(2),T12T.sub(2),T12T.sub(3)),4),
         Op(valu("v_add_f32",T12T.sub(0),T12T.sub(0),T12T.sub(2)),4)]
    vs+=grp(0,p,2,0,pos["b2"],p,extra=(T12T.sub(0),T12T.sub(1)))
    vs+=grp(0,p,3,0,pos["b2"],p)
    for g_ in range(4): vs+=grp(1,1-p,g_,pos["e1"]+2,pos.get("b0",10**6),p)
    for g_ in range(4): vs+=grp(2,p,g_,pos["e2"]+2,(n-3) if not last else 10**6,p)
    if not last: vs+=grp(0,1-p,0,pos["e0"]+2,10**6,1-p)
    KO=os.environ.get("KO","").split(",")
    if "small" in KO: smalls=[]
    if "dma" in KO: mem=[o for o in mem if o.i.kind!="dma"]
    if "dsw" in KO:
        for o in vs+smalls: o.then=None
    if "dsr" in KO: mem=[o for o in mem if o.i.kind!="dsr"]
    XV_=int(os.environ.get("XVALU","0"))
    if XV_:
        v2=[]
        for k,o in enumerate(vs):
            v2.append(o)
            if k%3==0 and XV_>0: v2.append(Op(valu("v_mul_f32",V(108+k%4),V(1),V(2)),o.lo,o.hi)); XV_-=1
        vs=v2
    c=schedule(M,vs,mem,smalls,sal)
    return c

def pre_interval(XA,X12A):
    M=g1_block(0,0)
    def xr(s,k): return dsr("ds_read_b128",XF(s,k),XA[k&1][k>=6],2*s*12288+k*1024)
    c=[]
    for k in range(4): c+=w1_reads(k,0)+[xr(0,k)]
    mem=[]
    for k in range(4,12):
        for x in w1_reads(k,0)+[xr(0,k)]: mem.append(Op(x,0,k-3))
    for k in range(6): mem.append(Op(dsr("ds_read_b128",X12F(k),X12A,128*k),0,9))
    for s in (1,2):
        for k in range(12): mem.append(Op(xr(s,k),0,12))
    c+=schedule(M,[],mem,[],{},memcap=5)
    sm=[mfma(4,D12,W1F(k).sub(2*h,2),X12F(k).sub(2*h,2),D12 if (k or h) else 0) for k in range(6) for h in range(2)]
    gl=gelu_group(D(0).sub(0,4),0,STG(0).sub(0,2))
    c+=[sm[0],nop(1),sm[1],nop(1),sm[2],nop(1),sm[3],nop(1)]
    k=4
    for i,x in enumerate(gl):
        c.append(x)
        if i%2==1 and k<12: c.append(sm[k]); k+=1
    c.append(dsw("ds_write_b128",P12W,D12,P12))
    c+=[wait(vm=18,lgkm=0),barrier()]
    return c

def final():
    c=[]; a=c.append
    p=1
    def WF(k,l): return W1F(3*k+l)
    M=[]
    for s in range(3):
        for l in range(3):
            for k in range(4): M.append(mfma(32,ACC(s,l),WF(k,l),XF(0,4*s+k),ACC(s,l)))
    def hr(s,k): return dsr("ds_read_b128",XF(0,4*s+k),HR,HOFF[p]+(4*s+k)*1024)
    R12=V(108,2)
    for k in range(4): c+=w2_reads(WF(k,0),k,0,p)+[hr(0,k)]
    a(bload(2,R12,R12V,SX,sTB))
    mem=[]
    for l in (1,2):
        for k in range(4):
            for x in w2_reads(WF(k,l),k,l,p): mem.append(Op(x,0,max(1,4*l+k-3)))
    for k in range(2): mem.append(Op(dsr("ds_read_b128",H12F(k),H12R,512*p+128*k),0,3))
    for s in (1,2):
        for k in range(4): mem.append(Op(hr(s,k),0,9))
    smalls=[]
    for l in range(3):
        for k in range(2):
            for h in range(2):
                smalls.append(Op(mfma(4,ACC12(l),WF(k,l).sub(2*h,2),H12F(k).sub(2*h,2),ACC12(l)),5))
    A12W=V(110)
    vs=[Op(valu("v_lshlrev_b32",A12W,4,L)),Op(valu("v_add_u32",A12W,sT0,A12W))]
    sal={0:[salu("s_lshl_b32",sT0,sHN,1),salu("s_add_u32",sT0,sT0,sPM),salu("s_lshl_b32",sT0,sT0,10)]}
    for l in range(3): smalls[4*l+3].then=Op(dsw("ds_write_b128",A12W,ACC12(l),4096*l))
    def epi(s,l,lo):
        o=[]
        for q in range(2):
            r=ACC(s,l)
            for j in range(4): o.append(Op(valu("v_cvt_pk_bf16_f32",r.sub(8*q+j),r.sub(8*q+2*j),r.sub(8*q+2*j+1)),lo))
            o[-1].then=Op(dsw("ds_write_b128",OSW(s),r.sub(8*q,4),64*l+32*q))
        return o
    def stores(rows,tmp):
        o=[]
        return o
    for l in range(3): vs+=epi(0,l,4*l+4+3)
    c+=schedule(M[:20],vs,mem,smalls,sal,memcap=4)
    c+=[wait(lgkm=0),barrier()]
    SB=[V(48+4*i,4) for i in range(8)]
    sRow,sRow2="s70","s71"; RA=[V(32+i) for i in range(3)]
    def row_setup(r0):
        return [salu("s_add_u32",sT0,sW,r0),salu("s_mul_i32",sRow,sT0,ROWB),salu("s_add_u32",sRow,sRow,sTB),salu("s_add_u32",sRow2,sRow,2688),
                salu("s_mul_i32",sT0,sT0,5600)]+[valu("v_add_u32",RA[k],sT0,OSR(k)) for k in range(3)]
    def row_ops(b0):
        rd=[dsr("ds_read_b128",SB[(b0+k)%8],RA[k%3],2800*(k//3)) for k in range(6)]
        st=[bstore(4,SB[(b0+k)%8],L16S,SOUT,sRow if k<3 else sRow2,off=896*(k%3),aux=STAUX) for k in range(6)]
        return rd,st
    c+=row_setup(0)
    rd,st=row_ops(0)
    PT=V(84,16)
    mem=[Op(x,0,3) for x in rd]+[Op(x,3+i,4+i) for i,x in enumerate(st)]
    mem+=[Op(dsr("ds_read_b128",PT.sub(4*i,4),A12R,512*i),0,4) for i in range(4)]
    vs=[]
    for l in range(3): vs+=epi(1,l,max(0,12+4*l+4+3-20))
    t12=[]
    for j in range(4): t12.append(valu("v_add_f32",PT.sub(j),PT.sub(j),PT.sub(4+j)))
    for j in range(4): t12.append(valu("v_add_f32",PT.sub(8+j),PT.sub(8+j),PT.sub(12+j)))
    for j in range(4): t12.append(valu("v_add_f32",PT.sub(j),PT.sub(j),PT.sub(8+j)))
    for j in range(2):
        t12.append(valu("v_lshlrev_b32",PT.sub(4+2*j),16,R12.sub(j))); t12.append(valu("v_and_b32",PT.sub(5+2*j),0xffff0000,R12.sub(j)))
    for j in range(4): t12.append(valu("v_add_f32",PT.sub(j),PT.sub(j),PT.sub(4+j)))
    t12+=[valu("v_cvt_pk_bf16_f32",PT.sub(0),PT.sub(0),PT.sub(1)),valu("v_cvt_pk_bf16_f32",PT.sub(1),PT.sub(2),PT.sub(3))]
    t12=[Op(x,7) for x in t12]; t12[-1].then=Op(dsw("ds_write_b64",O12W,PT.sub(0,2)))
    vs+=t12
    c+=schedule(M[20:32],vs,mem,[],{},memcap=4)
    c+=[wait(lgkm=0),barrier()]
    c+=row_setup(4)
    rd,st=row_ops(6)
    mem=[Op(x,0,2) for x in rd]
    vs=epi(2,0,0)+epi(2,1,3)
    c+=schedule(M[32:36],vs,mem,[],{},memcap=4)
    c+=st
    for o in epi(2,2,0):
        c.append(o.i)
        if o.then: c.append(o.then.i)
    c+=[wait(lgkm=0),barrier()]
    c+=row_setup(8)
    rd,st=row_ops(4)
    c+=rd
    RB=[V(36+i) for i in range(3)]; sR3="s72"
    c+=[salu("s_mul_i32",sT0,sPM,ROWB),salu("s_mul_i32",sT1,sHN,2688),salu("s_add_u32",sR3,sT0,sT1),salu("s_add_u32",sR3,sR3,sTB),salu("s_add_u32",sR3,sR3,12*ROWB),
        salu("s_mul_i32",sT0,sW,2800),salu("s_add_u32",sT0,sT0,12*5600)]
    c+=[valu("v_add_u32",RB[k],sT0,OSR(k)) for k in range(3)]
    SC=[V(84+4*i,4) for i in range(3)]
    c+=[dsr("ds_read_b128",SC[k],RB[k]) for k in range(3)]
    c+=st
    c+=[bstore(4,SC[k],L16S,SOUT,sR3,off=896*k,aux=STAUX) for k in range(3)]
    return c

NST=[0]
def stamp():
    k=NST[0]; NST[0]+=1
    return [raw("s_memtime s[92:93]"),wait(lgkm=0),raw(f"s_sub_u32 s{74+k}, s92, s94")]
def add_stamps(code):
    out=[]
    for i in code:
        out.append(i)
        if i.kind=="barrier": out+=stamp()
    return out
def dump_stamps():
    c=[wait(vm=0)]+stamp()
    c+=[raw("s_memrealtime s[92:93]"),raw("s_load_dwordx2 s[4:5], s[0:1], 48"),wait(lgkm=0),raw(f"s_sub_u32 s{74+NST[0]}, s92, s95"),
        raw("s_mov_b32 s6, 0x1000000"),raw("s_mov_b32 s7, 0x20000"),raw("s_lshl_b32 s8, s2, 2"),raw(f"s_add_u32 s8, s8, {sW}"),raw("s_lshl_b32 s8, s8, 7"),raw("v_mov_b32 v1, s8")]
    for k in range(NST[0]+1):
        c+=[raw(f"v_mov_b32 v2, s{74+k}"),raw(f"buffer_store_dword v2, v1, s[4:7], 0 offen offset:{4*k}")]
    if DBG=="2":
        c+=[raw("s_load_dwordx2 s[4:5], s[0:1], 40"),wait(lgkm=0),raw("s_mov_b32 s6, 64"),raw("s_sub_u32 s8, s8, 51200"),raw("v_mov_b32 v1, s8")]
        for k in range(NST[0]+1):
            c+=[raw(f"v_mov_b32 v2, s{74+k}"),raw(f"buffer_store_dword v2, v1, s[4:7], 0 offen offset:{4*k}")]
    if os.environ.get("PADTO"):
        c+=[label("L_PAD"),raw("s_sleep 4"),raw("s_memrealtime s[92:93]"),wait(lgkm=0),raw("s_sub_u32 s92, s92, s95"),raw(f"s_cmp_lt_u32 s92, {os.environ['PADTO']}"),raw("s_cbranch_scc1 L_PAD")]
    print("nstamps",NST[0]+1,file=sys.stderr)
    return c
def endint(): return [wait(vm=0,lgkm=0),barrier()]

def build():
    segs=[]
    pro=prologue(); cv=conv_all(); ln,XA,X12A=layernorm(); pre=pre_interval(XA,X12A)
    i0=interval(0)+endint()
    head=insert_waits(pro+cv+ln+pre+i0)
    i1=insert_waits(interval(1)+endint()); i2=insert_waits(interval(2)+[salu("s_sub_u32",sCNT,sCNT,1),salu("s_cmp_lg_u32",None,sCNT,0)]+endint())
    i11=insert_waits(interval(11)+endint()); fin=insert_waits(final())
    errs=check_hazards(head+i1+i2+i1+i2+i11+fin,"all")
    for e in errs[:40]: print(e,file=sys.stderr)
    for nm,s in (("pro",pro),("conv",insert_waits(cv)),("ln",ln),("pre",insert_waits(pre)),("i0",insert_waits(i0)),("i1",i1),("i2",i2),("i11",i11),("fin",fin)):
        print(f"{nm}: {len(s)} insts est {est_cycles(s)} cyc",file=sys.stderr)
    if DBG:
        st0=[raw("s_memtime s[92:93]"),raw("s_memrealtime s[90:91]"),wait(lgkm=0),raw("s_mov_b32 s94, s92"),raw("s_mov_b32 s95, s90")]
        head=head[:2]+st0+add_stamps(head[2:]); i11=stamp()+add_stamps(i11); fin=add_stamps(fin)+dump_stamps()
    code=head+[salu("s_mov_b32",sCNT,5),raw(".p2align 6","label",0),label("L_LOOP")]+i1+i2+[raw("s_cbranch_scc1 L_LOOP")]+i11+fin+[label("L_END")]
    return code,errs

HDR=open("standalone__convnext_block__vision.s.ref").read()
def emit(code,path):
    head=HDR[:HDR.index("; @launch")]
    s=head+"; @launch grid=(256,1,1) block=(256,1,1) lds=163840\n"
    s+='''.amdgcn_target "amdgcn-amd-amdhsa--gfx950"
.text
.globl standalone__convnext_block__vision_kernel
.p2align 8
.type standalone__convnext_block__vision_kernel,@function
standalone__convnext_block__vision_kernel:
'''
    for i in code: s+=("" if i.kind=="label" else "    ")+i.txt+"\n"
    s+='''s_endpgm
.section .rodata,"a"
.p2align 6
.amdhsa_kernel standalone__convnext_block__vision_kernel
  .amdhsa_next_free_vgpr 512
  .amdhsa_next_free_sgpr 96
  .amdhsa_accum_offset 256
  .amdhsa_group_segment_fixed_size 0
  .amdhsa_kernarg_size 56
  .amdhsa_user_sgpr_count 2
  .amdhsa_user_sgpr_kernarg_segment_ptr 1
  .amdhsa_system_sgpr_workgroup_id_x 1
.end_amdhsa_kernel
'''
    open(path,"w").write(s)
if __name__=="__main__":
    code,errs=build()
    out=sys.argv[1] if len(sys.argv)>1 else "standalone__convnext_block__vision.s"
    emit(code,out)
    print("hazard errors:",len(errs),file=sys.stderr)
```

```python
class I:
    __slots__=("txt","kind","rd","wr","cost","passes","srd","swr","tag","cacc")
    def __init__(s,txt,kind,rd=(),wr=(),cost=4,passes=0,srd=(),swr=(),tag=None,cacc=None):
        s.txt=txt; s.kind=kind; s.rd=set(rd); s.wr=set(wr); s.cost=cost; s.passes=passes
        s.srd=set(srd); s.swr=set(swr); s.tag=tag; s.cacc=cacc
    def __repr__(s): return s.txt
def R(f,n,c=1): return [(f,n+i) for i in range(c)]
def rs(f,n,c=1): return f"{f}{n}" if c==1 else f"{f}[{n}:{n+c-1}]"
class Reg:
    def __init__(s,f,n,c=1): s.f=f; s.n=n; s.c=c
    def __str__(s): return rs(s.f,s.n,s.c)
    def regs(s): return R(s.f,s.n,s.c)
    def sub(s,o,c=1): return Reg(s.f,s.n+o,c)
def V(n,c=1): return Reg('v',n,c)
def A(n,c=1): return Reg('a',n,c)
def _ops(srcs):
    rd=[]; srd=[]
    for x in srcs:
        if isinstance(x,Reg): rd+=x.regs()
        elif isinstance(x,str):
            t=x.strip('-|')
            if t.startswith('s['):
                a,b=t[2:-1].split(':'); srd+=[f"s{i}" for i in range(int(a),int(b)+1)]
            elif t.startswith('s') and t[1:].isdigit(): srd.append(t)
            elif t in('vcc','exec','m0'): srd.append(t)
    return rd,srd
def fmt(x):
    if isinstance(x,float): return repr(x)
    if isinstance(x,int): return str(x) if -16<=x<=64 else hex(x&0xffffffff)
    return str(x)
TRANS=("v_exp_f32","v_rcp_f32","v_rsq_f32","v_exp_f16","v_rcp_f16","v_log_f32","v_sqrt_f32")
def valu(op,dst,*srcs,mod="",rmw=False,kind=None):
    rd,srd=_ops(srcs)
    base=op.replace("_sdwa","").replace("_e64","").replace("_e32","")
    k=kind or ("trans" if base in TRANS else "valu")
    if "dpp" in op: k="dpp"
    wr=[];swr=[]
    if isinstance(dst,Reg): wr=dst.regs()
    else: swr=_ops([dst])[1]
    if rmw: rd+=wr
    txt=f"{op} {dst}, "+", ".join(fmt(x) for x in srcs)+(" "+mod if mod else "")
    return I(txt,k,rd,wr,8 if k=="trans" else 4,srd=srd,swr=swr)
def salu(op,dst,*srcs):
    _,srd=_ops(srcs); swr=_ops([dst])[1] if dst is not None else []
    ops=([str(dst)] if dst is not None else [])+[fmt(x) for x in srcs]
    return I(f"{op} "+", ".join(ops),"salu",srd=srd,swr=swr)
def raw(txt,kind="salu",cost=4): return I(txt,kind,cost=cost)
def label(n): return I(f"{n}:","label",cost=0)
def mfma(shape,d,a,b,c):
    op,p={32:("v_mfma_f32_32x32x16_bf16",8),16:("v_mfma_f32_16x16x32_bf16",4),4:("v_mfma_f32_4x4x4_16b_bf16",2)}[shape]
    rd=a.regs()+b.regs()
    cc=None
    if isinstance(c,Reg): cc=c
    i=I(f"{op} {d}, {a}, {b}, {fmt(c)}","mfma",rd,d.regs(),8 if shape!=4 else 4,passes=p,cacc=cc)
    return i
def dsr(op,d,addr,off=0,mod=None):
    assert 0<=off<65536,off
    m=mod if mod is not None else (f"offset:{off}" if off else "")
    return I(f"{op} {d}, {addr} {m}".rstrip(),"dsr",addr.regs(),d.regs())
def dsw(op,addr,data,off=0):
    assert 0<=off<65536,off
    cost={"ds_write_b128":20,"ds_write_b64":12}.get(op,8)
    return I(f"{op} {addr}, {data}"+(f" offset:{off}" if off else ""),"dsw",addr.regs()+data.regs(),cost=cost)
def dma(voff,srd,soff,off=0,aux=""):
    _,s=_ops([srd,soff if isinstance(soff,str) else "0"])
    return I(f"buffer_load_dwordx4 {voff}, {srd}, {soff} offen"+(f" offset:{off}" if off else "")+(f" {aux}" if aux else "")+" lds","dma",voff.regs(),srd=s+["m0"],cost=8)
def bload(n,d,voff,srd,soff,off=0,aux=""):
    op={1:"buffer_load_dword",2:"buffer_load_dwordx2",4:"buffer_load_dwordx4"}[n]
    _,s=_ops([srd,soff if isinstance(soff,str) else "0"])
    assert 0<=off<4096
    return I(f"{op} {d}, {voff}, {srd}, {soff} offen"+(f" offset:{off}" if off else "")+(f" {aux}" if aux else ""),"vld",voff.regs(),d.regs(),srd=s,cost=8)
def bstore(n,d,voff,srd,soff,off=0,aux=""):
    op={1:"buffer_store_dword",2:"buffer_store_dwordx2",4:"buffer_store_dwordx4"}[n]
    _,s=_ops([srd,soff if isinstance(soff,str) else "0"])
    assert 0<=off<4096
    return I(f"{op} {d}, {voff}, {srd}, {soff} offen"+(f" offset:{off}" if off else "")+(f" {aux}" if aux else ""),"vst",voff.regs()+d.regs(),srd=s,cost=8,tag=("data",tuple(d.regs()),n))
def wait(vm=None,lgkm=None):
    p=[]
    if vm is not None: p.append(f"vmcnt({vm})")
    if lgkm is not None: p.append(f"lgkmcnt({lgkm})")
    return I("s_waitcnt "+" ".join(p),"wait",tag=("wait",vm,lgkm))
def nop(n): return I(f"s_nop {n}","nop",cost=4*(n+1),tag=("nop",n+1))
def barrier(): return I("s_barrier","barrier")

def allrd(i):
    r=set(i.rd)
    if i.cacc is not None: r|=set(i.cacc.regs())
    return r

def insert_waits(code,vm_pending=None):
    out=[]
    st={"l":[0,0,{},15],"v":[0,0,{},63]}
    n=len(code)
    def need(i,c):
        k=-1; iss,done,pend,_=st[c]
        for r in allrd(i)|i.wr:
            if r in pend and pend[r]>=done: k=max(k,pend[r])
        return k
    def emit(kl,kv):
        a={}
        for c,k in (("l",kl),("v",kv)):
            if k>=0:
                N=min(st[c][3],st[c][0]-1-k); a[c]=N; st[c][1]=max(st[c][1],st[c][0]-N)
        if a: out.append(wait(vm=a.get("v"),lgkm=a.get("l")))
    for idx,i in enumerate(code):
        if i.kind=="wait":
            if i.tag[2] is not None: st["l"][1]=max(st["l"][1],st["l"][0]-i.tag[2])
            if i.tag[1] is not None: st["v"][1]=max(st["v"][1],st["v"][0]-i.tag[1])
        emit(need(i,"l"),need(i,"v"))
        out.append(i)
        if i.kind in("dsr","dsw"):
            if i.kind=="dsr":
                for r in i.wr: st["l"][2][r]=st["l"][0]
            st["l"][0]+=1
        if i.kind in("vld","vst","dma"):
            if i.kind=="vld":
                for r in i.wr: st["v"][2][r]=st["v"][0]
            st["v"][0]+=1
        if i.kind=="mfma" and i.passes>=4:
            kl=kv=-1
            for j in range(idx+1,n):
                c=code[j]
                if c.kind in("wait","barrier","label"): break
                kl=max(kl,need(c,"l")); kv=max(kv,need(c,"v"))
                if c.kind=="mfma" and c.passes>=4: break
            emit(kl,kv)
    return out

def fix_hazards(code):
    code=list(code)
    while True:
        e=check_hazards(code,"",first=True)
        if not e: return code
        idx,short=e
        code.insert(idx,nop(short-1))
def check_hazards(code,name="",first=False):
    errs=[]
    pos=0; lastw={}
    lasts={}
    stdata={}
    MV={2:5,4:8,8:12}; MC={2:4,4:6,8:10}
    for cidx,i in enumerate(code):
        if i.kind=="label": continue
        short=0
        def dist(p): return pos-p-1
        isv=i.kind in("valu","trans","dpp","perml","rfl")
        for r in allrd(i)|i.wr:
            if r not in lastw: continue
            p,k,pi=lastw[r]; d=dist(p)
            isread=r in allrd(i)
            if k=="mfma":
                if i.kind=="mfma":
                    if r in i.rd: req=MV[pi.passes]
                    elif i.cacc is not None and r in i.cacc.regs():
                        same=(set(i.cacc.regs())==pi.wr and i.passes==pi.passes)
                        req=(2 if pi.passes==2 else 0) if same else MC[pi.passes]
                    else: req=MC[pi.passes]
                else: req=MV[pi.passes]
                if d<req: errs.append(f"{name}: MFMA hazard d={d}<{req}: {pi.txt} -> {i.txt}"); short=max(short,req-d)
            elif k in("valu","trans","dpp","perml") and isread:
                req=0
                if i.kind=="mfma": req=2
                elif i.kind=="dpp": req=2
                elif i.kind=="perml": req=2
                elif i.kind=="rfl": req=1
                elif k=="trans" and i.kind!="trans": req=1
                if pi.tag=="sdwa" and isv: req=max(req,1)
                if d<req: errs.append(f"{name}: VALU hazard d={d}<{req}: {pi.txt} -> {i.txt}"); short=max(short,req-d)
        for r in i.wr:
            if r in stdata and dist(stdata[r])<2: errs.append(f"{name}: store data WAR: {i.txt}"); short=max(short,2-dist(stdata[r]))
        for s in i.srd:
            if s in lasts:
                p,k=lasts[s]; d=dist(p); req=0
                if k=="v":
                    if isv: req=2
                    elif i.kind in("vld","vst","dma"): req=5
                    elif i.kind=="salu": req=1
                elif k=="s" and s=="m0" and i.kind=="dma": req=1
                if d<req: errs.append(f"{name}: SGPR hazard {s} d={d}<{req}: {i.txt}"); short=max(short,req-d)
        if first and short: return (cidx,short)
        for r in i.wr: lastw[r]=(pos,i.kind,i)
        for s in i.swr: lasts[s]=(pos,"v" if isv else "s")
        if i.kind=="vst" and i.tag and i.tag[0]=="data" and i.tag[2]>=3:
            for r in i.tag[1]: stdata[r]=pos
        pos+= i.tag[1] if i.kind=="nop" else 1
    return None if first else errs

def est_cycles(code):
    t=0; pipe=0; prev=None
    for i in code:
        if i.kind=="label": continue
        c=i.cost
        if i.kind=="mfma":
            t=max(t,pipe); pipe=t+4*i.passes
        if i.kind in("salu","wait") and prev is not None and prev.kind=="mfma" and prev.passes>=4: c=0
        if i.kind in("dsr","dsw","dma","vld","vst") and prev is not None and prev.kind in("valu","trans","dpp"): c+=8
        t+=c; prev=i
    return t
```

```python
import struct, sys, math, os
from isa import *
def f32(x): return struct.unpack('<I', struct.pack('<f', x))[0]
K1=2*math.sqrt(2/math.pi)*math.log2(math.e); K3=K1*0.044715; AA=K3**(1/3); CC=K1/AA
ROWB=86016; XSZ=19267584
W2S=[0,24576]; P12=49152; H12=57344; HBASE=59392; HOFF=[24576,0]; W1BASE=114688; W1OFF=[24576,0]
OS=83968; RPS=10248; DWB=102656; X12B=53248; ZB=58368; ST12=98304; DUMMY=124928
def XEX(tau): return tau*12288+(10240 if tau>=4 else 0)
L=V(0)
W1LO,W1HI=V(1),V(2)
def W2A(hi): return V(3+hi)
def RLA(s,q): return V(22+s) if q==0 else V(5+s)
HW,HR,P12W,P12R,H12W,H12R=V(9),V(10),V(11),V(12),V(13),V(14)
DW1=V(15)
def DW2(k): return V(16+k)
def OSW(s): return V(19+s)
def OSR(k): return V(25+k)
L16S=V(28); A12R,R12V,O12W=V(29),V(30),V(31)
def GT(i): return V(32+i)
def STG(b): return V(40+4*b,4)
def D(b): return V(48+16*b,16)
D12=V(80,4)
def ACC12(l): return V(84+4*l,4)
T12T=V(96,4)
def H12F(k): return V(100+4*k,4)
def ACC(s,l): return V(112+16*(3*s+l),16)
def XF(s,k): return A(48*s+4*k,4)
def W1F(k): return A(144+4*k,4)
def X12F(k): return A(192+4*k,4)
def HF(i): return A(216+4*(i%6),4)
def W2F(i): return A(240+4*(i%4),4)
def IDF(q): return A(240+4*q,4)
def RES(ti,q): return V(112+48*ti+q)
def RES12(k): return V(100+k)
def CD(i): return V(48+4*(i%4),4)
def CB(ti,u): return V(64+8*ti+u)
def CB12(i): return V(88+i)
def CA(th): return V(90+th)
def CA12(th): return V(94+th)
def XV(k): return V(32+k)
NBR=5
def BR(i): return A(8*(i%NBR),8)
def AR(i): return A(64+8*(i%3),8)
SX,SDW,SW1,SW2,SOUT="s[16:19]","s[20:23]","s[24:27]","s[28:31]","s[32:35]"
sW,sPM,sHN,sY0,sX0,sXB,sTB="s36","s37","s38","s39","s40","s41","s42"
sHH="s43"; MB1="s[44:45]"
def sM0X(k): return f"s{46+k}"
sCNT,sW1O,sW2O,sT0,sT1,sM1,sM2="s60","s61","s62","s63","s64","s65","s66"
sNA="s67"; sT2,sT3="s68","s69"
UREG={5:"s70",6:"s71",7:"s72"}
XAUX=os.environ.get("XAUX","")
STAUX=os.environ.get("STAUX","sc1")
DBG=os.environ.get("DBG","")

PARK={}
def park(a,name,reg):
    PARK[name]=A(192+len(PARK)); a(valu("v_accvgpr_write_b32",PARK[name],reg))
def prologue():
    c=[]; a=c.append
    a(salu("s_cmp_ge_u32",None,"s2",256)); a(raw("s_cbranch_scc1 L_END"))
    for i,r in enumerate((16,20,24,28,32)):
        a(I(f"s_load_dwordx2 s[{r}:{r+1}], s[0:1], {8*i}","salu"))
    t=[V(200+i) for i in range(40)]
    a(valu("v_lshrrev_b32",t[0],6,L))
    a(valu("v_lshrrev_b32",t[1],3,L))
    a(valu("v_readfirstlane_b32",sW,t[0],kind="rfl"))
    a(valu("v_and_b32",t[2],7,L))
    a(valu("v_and_b32",L,63,L))
    a(salu("s_lshr_b32",sY0,"s2",6))
    a(salu("s_lshl_b32",sT0,"s2",1)); a(salu("s_and_b32",sT0,sT0,12)); a(salu("s_add_u32",sY0,sY0,sT0))
    a(salu("s_bfe_u32",sX0,"s2",0x30003))
    a(salu("s_lshl_b32",sT0,"s2",3)); a(salu("s_and_b32",sT0,sT0,8)); a(salu("s_add_u32",sX0,sX0,sT0))
    a(salu("s_mul_i32",sTB,sY0,14*ROWB)); a(salu("s_mul_i32",sX0,sX0,14))
    a(salu("s_mul_i32",sT0,sX0,384)); a(salu("s_add_u32",sTB,sTB,sT0))
    a(salu("s_sub_u32",sXB,sTB,3*ROWB+3*384))
    a(salu("s_sub_u32",sX0,sX0,3))
    a(salu("s_mov_b32","s18",XSZ)); a(salu("s_mov_b32","s19",0x20000))
    a(salu("s_mov_b32",sT2,-20)); a(salu("s_movk_i32",sT3,384))
    a(valu("v_mov_b32",t[3],0x80000000))
    first=True
    for k in range(5):
        p,row,col,x,y=t[4],t[5],t[6],t[7],t[8]
        if k: a(valu("v_add_u32",p,32*k,t[1]))
        else: p=t[1]
        a(valu("v_mul_u32_u24",row,0xccd,p)); a(valu("v_lshrrev_b32",row,16,row))
        a(valu("v_mad_i32_i24",col,row,sT2,p))
        a(valu("v_add_u32",x,sX0,col)); a(valu("v_cmp_gt_u32","vcc",224,x))
        a(valu("v_bfe_u32",x,col,1,3)); a(valu("v_xor_b32",x,x,t[2]))
        a(valu("v_mul_u32_u24",y,ROWB,row)); a(valu("v_mad_u32_u24",y,col,sT3,y))
        a(valu("v_lshl_add_u32",y,x,4,y)); a(valu("v_add_u32",y,sXB,y))
        a(valu("v_cndmask_b32",XV(k),t[3],y,"vcc"))
        a(valu("v_add_u32",XV(k+5),8*ROWB,XV(k)))
        a(salu("s_add_u32",sT0,sW,4*k)); a(salu("s_mul_i32",sT1,sT0,205)); a(salu("s_lshr_b32",sT1,sT1,10))
        a(salu("s_mul_i32",sT1,sT1,RPS-5120)); a(salu("s_lshl_b32",sT0,sT0,10)); a(salu("s_add_u32",sM0X(k),sT0,sT1))
        a(salu("s_add_u32",sM0X(k+5),sM0X(k),4*RPS))
        if k<2:
            a(valu("v_add_u32",XV(k+10),16*ROWB,XV(k))); a(salu("s_add_u32",sM0X(k+10),sM0X(k),8*RPS))
        if k==2:
            a(salu("s_add_u32",sT0,sM0X(2),8*RPS))
            a(salu("s_cmp_lt_u32",None,sW,2))
            a(salu("s_cselect_b32",sT1,16*ROWB,0x40000000))
            a(salu("s_cselect_b32",sM0X(12),sT0,DUMMY))
            a(valu("v_add_u32",XV(12),sT1,XV(2)))
        if first: a(wait(lgkm=0)); first=False
        for kk in (k,k+5,k+10):
            if kk<=12:
                a(salu("s_mov_b32","m0",sM0X(kk))); a(nop(0)); a(dma(XV(kk),SX,0,aux=XAUX))
    a(salu("s_mov_b32","s22",18816)); a(salu("s_mov_b32","s23",0x20000))
    a(salu("s_mul_i32",sT0,sW,320)); a(valu("v_add_u32",t[4],sT0,L))
    a(salu("s_mul_i32",sT1,sW,5120)); a(salu("s_add_u32",sT1,sT1,DWB))
    for i in range(5):
        U,tp=t[5],t[6]
        a(valu("v_add_u32",U,64*i,t[4])); a(valu("v_mul_u32_u24",tp,0xa3e,U)); a(valu("v_lshrrev_b32",tp,16,tp))
        a(valu("v_sub_u32",U,U,tp)); a(valu("v_lshlrev_b32",t[10+i],4,U))
        a(salu("s_add_u32","m0",sT1,1024*i)); a(nop(0)); a(dma(t[10+i],SDW,0))
    a(salu("s_mov_b32","s26",294912)); a(salu("s_mov_b32","s27",0x20000))
    a(salu("s_mov_b32","s30",294912)); a(salu("s_mov_b32","s31",0x20000))
    a(salu("s_mov_b32","s34",XSZ)); a(salu("s_mov_b32","s35",0x20000))
    a(salu("s_lshr_b32",sPM,sW,1)); a(salu("s_and_b32",sHN,sW,1)); a(salu("s_xor_b32",sHH,sPM,sHN))
    a(salu("s_mov_b32",sNA,f32(-AA)))
    for u in (5,6,7): a(salu("s_movk_i32",UREG[u],16*u))
    a(salu("s_mov_b32","s44",0xcccccccc)); a(salu("s_mov_b32","s45",0xcccccccc))
    cS,rp,g,g0,g1,l16=t[0],t[1],t[2],t[3],t[4],t[5]
    a(valu("v_and_b32",cS,3,L)); a(valu("v_bfe_u32",rp,L,2,2)); a(valu("v_lshrrev_b32",g,4,L))
    a(valu("v_and_b32",g0,1,g)); a(valu("v_lshrrev_b32",g1,5,L)); a(valu("v_lshlrev_b32",l16,4,L))
    lp=t[6]
    a(valu("v_mul_u32_u24",lp,20,g1)); a(valu("v_add_u32",lp,lp,g0)); a(valu("v_lshlrev_b32",lp,7,lp))
    a(salu("s_mul_i32",sT0,sW,12)); a(salu("s_mov_b32",sT2,-7)); a(salu("s_movk_i32",sT3,RPS))
    for ti in range(3):
        P,Rr,j,b=t[7],t[8],t[9],t[15]
        a(valu("v_add_u32",P,sT0,cS))
        if ti: a(valu("v_add_u32",P,4*ti,P))
        a(valu("v_mul_u32_u24",Rr,0x2493,P)); a(valu("v_lshrrev_b32",Rr,16,Rr))
        a(valu("v_mad_i32_i24",j,Rr,sT2,P)); a(valu("v_add_u32",j,j,rp))
        a(valu("v_mad_u32_u24",b,Rr,sT3,lp)); a(valu("v_lshl_add_u32",b,j,8,b))
        a(valu("v_and_b32",j,7,j)); a(valu("v_lshlrev_b32",j,4,j))
        for u in range(8): a(valu("v_xad_u32",CB(ti,u),j,sU(u),b))
    j,b=t[9],t[15]
    a(valu("v_add_u32",j,6,rp)); a(valu("v_add_u32",b,6*RPS,lp)); a(valu("v_lshl_add_u32",b,j,8,b))
    a(valu("v_and_b32",j,7,j)); a(valu("v_lshlrev_b32",j,4,j))
    a(salu("s_lshl_b32",sT1,sW,5)); a(valu("v_xor_b32",j,sT1,j)); a(valu("v_add_u32",CB12(0),j,b)); a(valu("v_xad_u32",CB12(1),j,16,b))
    oh,ow,jj,i0,tp=t[7],t[8],t[9],t[15],t[16]
    a(valu("v_lshrrev_b32",oh,1,cS)); a(valu("v_and_b32",ow,1,cS))
    a(valu("v_lshl_add_u32",jj,rp,1,g0)); a(valu("v_sub_u32",jj,jj,ow)); a(valu("v_sub_u32",i0,g1,oh))
    a(salu("s_movk_i32",sT3,400)); a(valu("v_mov_b32",t[18],DWB))
    for th in range(4):
        ii,z=t[17],t[19]
        a(valu("v_add_u32",ii,2*th,i0)); a(valu("v_mad_i32_i24",tp,ii,7,jj))
        a(valu("v_max_u32",ii,ii,jj)); a(valu("v_cmp_gt_u32","vcc",7,ii))
        a(valu("v_mad_u32_u24",tp,tp,sT3,t[18]))
        a(valu("v_sub_u32",z,22-2*th,g1)); a(valu("v_and_b32",z,15,z)); a(valu("v_lshlrev_b32",z,4,z)); a(valu("v_add_u32",z,DWB+19600,z))
        a(valu("v_cndmask_b32",CA(th),z,tp,"vcc"))
        a(valu("v_add_u32",CA12(th),sT1,CA(th)))
    lam,up,x,y=t[7],t[8],t[9],t[15]
    a(valu("v_lshrrev_b32",lam,3,L)); a(valu("v_and_b32",up,7,L))
    a(valu("v_and_b32",x,3,lam)); a(valu("v_lshlrev_b32",x,2,x)); a(valu("v_add_u32",x,x,g1))
    a(valu("v_mul_u32_u24",x,1536,x))
    a(valu("v_lshlrev_b32",y,2,g0)); a(valu("v_xor_b32",y,y,up)); a(valu("v_lshl_add_u32",DW1,y,4,x))
    for k in range(3):
        a(valu("v_add_u32",x,64*k,L)); a(valu("v_mul_u32_u24",x,0xaab,x)); a(valu("v_bfe_u32",x,x,17,1))
        a(valu("v_lshlrev_b32",x,6,x)); a(valu("v_xor_b32",DW2(k),x,l16))
    a(salu("s_mul_i32",sW1O,sW,73728)); a(salu("s_mul_i32",sW2O,sW,6144))
    a(salu("s_add_u32",sM1,sW2O,W1BASE)); a(salu("s_mov_b32",sM2,sW2O))
    hb,pc,x,y,z=t[7],t[8],t[9],t[15],t[16]
    a(valu("v_lshrrev_b32",hb,1,rp))
    a(valu("v_lshl_add_u32",x,g1,2,rp))
    a(valu("v_xor_b32",y,sHH,hb)); a(valu("v_lshlrev_b32",y,6,y)); a(valu("v_lshl_add_u32",y,x,7,y))
    a(valu("v_lshl_add_u32",y,g0,5,y)); a(valu("v_lshl_add_u32",y,cS,3,y))
    a(salu("s_mul_i32",sT0,sPM,12288)); a(salu("s_add_u32",sT1,sT0,W1BASE)); a(salu("s_sub_u32",sT2,W1BASE,sT0))
    a(valu("v_add_u32",W1LO,sT1,y)); a(valu("v_add_u32",W1HI,sT2,y))
    a(valu("v_and_b32",pc,1,cS)); a(valu("v_lshlrev_b32",pc,1,pc)); a(valu("v_lshrrev_b32",z,1,cS)); a(valu("v_add_u32",pc,pc,z))
    a(valu("v_mul_u32_u24",y,384,x)); a(valu("v_lshl_add_u32",y,g0,5,y)); a(valu("v_lshl_add_u32",y,pc,3,y))
    a(valu("v_xor_b32",z,sHN,hb)); a(valu("v_lshl_add_u32",z,z,6,y))
    a(salu("s_sub_u32",sT1,12288,sT0))
    a(valu("v_add_u32",W2A(0),sT0,z)); a(valu("v_add_u32",W2A(1),sT1,z))
    a(salu("s_add_u32",sT1,sT0,HBASE)); a(valu("v_add_u32",HR,sT1,l16))
    a(salu("s_lshl_b32",sT2,sHN,11)); a(valu("v_add_u32",HW,sT2,HR))
    a(salu("s_lshl_b32",sT1,sHH,1)); a(salu("s_add_u32",sT1,sT1,sPM)); a(salu("s_lshl_b32",sT1,sT1,10)); a(valu("v_add_u32",P12W,sT1,l16))
    gc=t[20]
    a(valu("v_lshl_add_u32",gc,g,4,cS)); a(valu("v_lshlrev_b32",gc,4,gc)); a(valu("v_lshl_add_u32",x,rp,2,gc))
    a(salu("s_lshl_b32",sT1,sHH,11)); a(salu("s_lshl_b32",sT2,sPM,6)); a(salu("s_add_u32",sT1,sT1,sT2)); a(salu("s_add_u32",sT1,sT1,P12))
    a(valu("v_add_u32",P12R,sT1,x))
    a(valu("v_lshlrev_b32",x,6,g0)); a(valu("v_lshl_add_u32",x,cS,4,x)); a(valu("v_lshl_add_u32",x,g1,3,x)); a(valu("v_lshl_add_u32",x,rp,1,x))
    a(salu("s_lshl_b32",sT1,sHH,8)); a(salu("s_lshl_b32",sT2,sPM,7)); a(salu("s_add_u32",sT1,sT1,sT2)); a(salu("s_add_u32",sT1,sT1,H12))
    a(valu("v_add_u32",H12W,sT1,x))
    a(valu("v_cmp_eq_u32","vcc",rp,g0))
    a(valu("v_lshlrev_b32",x,6,g1)); a(valu("v_lshl_add_u32",x,cS,4,x)); a(valu("v_mov_b32",z,ZB))
    a(salu("s_lshl_b32",sT1,sPM,8)); a(salu("s_add_u32",sT1,sT1,H12)); a(valu("v_add_u32",y,sT1,x)); a(valu("v_cndmask_b32",H12R,z,y,"vcc"))
    a(salu("s_mul_i32",sT1,sPM,768)); a(salu("s_add_u32",sT1,sT1,X12B)); a(valu("v_add_u32",y,sT1,x)); a(valu("v_cndmask_b32",y,z,y,"vcc")); park(a,"x12a",y)
    a(salu("s_mov_b32",sT2,-7)); a(salu("s_movk_i32",sT3,400)); a(salu("s_lshl_b32",sT1,sHN,6))
    ch,oh,ow=t[17],t[18],t[19]
    a(valu("v_lshl_add_u32",ch,g1,4,sT1)); a(valu("v_lshrrev_b32",oh,1,rp)); a(valu("v_and_b32",ow,1,rp))
    fix=t[21]
    a(valu("v_mul_u32_u24",fix,RPS-2560,oh)); a(valu("v_lshl_add_u32",fix,ow,7,fix)); a(valu("v_add_u32",fix,RPS+2560+384,fix))
    a(salu("s_lshl_b32",sT0,sPM,3)); a(salu("s_movk_i32",sCNT,RPS))
    for s in range(3):
        P,Rr,Cc,x,y=t[9],t[15],t[16],t[22],t[23]
        a(valu("v_lshl_add_u32",P,g0,2,cS)); a(valu("v_add_u32",P,sT0,P))
        if s: a(valu("v_add_u32",P,16*s,P))
        a(valu("v_mul_u32_u24",Rr,0x2493,P)); a(valu("v_lshrrev_b32",Rr,16,Rr)); a(valu("v_mad_i32_i24",Cc,Rr,sT2,P))
        a(valu("v_mad_u32_u24",x,Rr,sCNT,fix)); a(valu("v_lshl_add_u32",x,Cc,8,x))
        a(valu("v_add3_u32",y,Cc,ow,1)); a(valu("v_and_b32",y,7,y)); a(valu("v_lshlrev_b32",y,4,y)); a(valu("v_xor_b32",y,y,ch))
        a(valu("v_add_u32",RLA(s,0),x,y)); a(valu("v_xad_u32",RLA(s,1),y,32,x))
        a(valu("v_lshl_add_u32",Rr,Rr,1,oh)); a(valu("v_lshl_add_u32",Cc,Cc,1,ow))
        a(valu("v_mad_u32_u24",P,Rr,14,Cc)); a(valu("v_mad_u32_u24",P,P,sT3,ch)); a(valu("v_add_u32",OSW(s),OS,P))
    for k in range(3):
        x=t[9]
        a(valu("v_add_u32",x,56*k,L)); a(valu("v_mul_u32_u24",t[15],0xaab,x)); a(valu("v_lshrrev_b32",t[15],16,t[15]))
        a(valu("v_add_u32",x,x,t[15])); a(valu("v_lshlrev_b32",x,4,x)); a(valu("v_add_u32",OSR(k),OS,x))
    a(valu("v_cmp_gt_u32","vcc",56,L)); a(valu("v_mov_b32",t[9],0x80000000)); a(nop(0)); a(valu("v_cndmask_b32",L16S,t[9],l16,"vcc"))
    lc,x,y=t[9],t[15],t[16]
    a(salu("s_lshl_b32",sT0,sPM,1)); a(valu("v_mov_b32",lc,sT0)); a(valu("v_cmp_eq_u32","vcc",0,oh)); a(nop(1)); a(valu("v_cndmask_b32",lc,1,lc,"vcc"))
    a(valu("v_lshl_add_u32",x,ow,6,gc)); a(valu("v_lshl_add_u32",x,lc,12,x)); a(salu("s_lshl_b32",sT0,sHN,11)); a(valu("v_add_u32",A12R,sT0,x))
    a(valu("v_lshl_add_u32",x,g0,1,g1)); a(valu("v_lshlrev_b32",x,3,x)); a(valu("v_lshl_add_u32",x,ow,5,x)); a(valu("v_lshl_add_u32",x,lc,7,x)); a(valu("v_add_u32",x,sT1,x))
    a(valu("v_lshrrev_b32",y,1,cS)); a(valu("v_and_b32",lc,1,cS))
    a(valu("v_mul_u32_u24",t[17],ROWB,y)); a(valu("v_mul_u32_u24",t[18],384,lc)); a(valu("v_add3_u32",R12V,t[17],t[18],x)); a(valu("v_add_u32",R12V,12*ROWB+12*384,R12V))
    a(valu("v_mad_u32_u24",y,y,14,lc)); a(valu("v_mad_u32_u24",y,y,sT3,x)); a(valu("v_add_u32",O12W,OS+(12*14+12)*400,y))
    key,val,x=t[9],t[15],t[16]
    a(valu("v_bfe_u32",key,L,3,2)); a(valu("v_lshlrev_b32",key,1,key)); a(valu("v_bfe_u32",x,L,1,1)); a(valu("v_add_u32",key,key,x))
    a(valu("v_and_b32",x,1,rp)); a(valu("v_xor_b32",x,x,g1)); a(valu("v_lshl_add_u32",key,x,4,key))
    a(valu("v_and_b32",x,1,L)); a(valu("v_lshlrev_b32",x,4,x)); a(valu("v_mov_b32",val,0x3f80)); a(valu("v_lshlrev_b32",val,x,val))
    for d in range(8):
        a(valu("v_cmp_eq_u32","vcc",d,key)); a(nop(1)); a(valu("v_cndmask_b32",x,0,val,"vcc")); a(valu("v_accvgpr_write_b32",A(240+d),x))
    x,y,n=t[9],t[15],t[16]
    a(valu("v_lshlrev_b32",x,5,g)); a(valu("v_add_u32",x,ST12,x)); park(a,"str",x)
    a(salu("s_lshl_b32",sT0,sW,3)); a(valu("v_add_u32",x,sT0,x)); park(a,"stw",x)
    a(valu("v_lshrrev_b32",n,2,L)); a(valu("v_lshlrev_b32",x,1,cS)); a(valu("v_xor_b32",n,n,x)); a(valu("v_lshlrev_b32",n,4,n)); a(valu("v_lshl_add_u32",n,cS,9,n))
    a(salu("s_mul_i32",sT0,sW,3))
    for ti in range(3):
        a(salu("s_add_u32",sT1,sT0,ti)); a(salu("s_lshr_b32",sT2,sT1,1)); a(salu("s_mul_i32",sT2,sT2,12288))
        a(salu("s_lshr_b32",sT3,sT1,3)); a(salu("s_mul_i32",sT3,sT3,10240)); a(salu("s_add_u32",sT2,sT2,sT3))
        a(salu("s_and_b32",sT1,sT1,1)); a(salu("s_lshl_b32",sT1,sT1,8)); a(salu("s_add_u32",sT1,sT1,sT2))
        a(valu("v_add_u32",x,sT1,n)); park(a,f"xw{ti}",x)
    a(valu("v_lshlrev_b32",x,6,cS)); a(valu("v_lshl_add_u32",x,g,4,x))
    a(salu("s_lshl_b32",sT1,sPM,8)); a(salu("s_lshl_b32",sT2,sHN,3)); a(salu("s_add_u32",sT1,sT1,sT2)); a(salu("s_add_u32",sT1,sT1,X12B))
    a(valu("v_add_u32",x,sT1,x)); park(a,"x12w",x)
    a(valu("v_lshlrev_b32",n,1,g1)); a(valu("v_xor_b32",n,n,L)); a(valu("v_lshlrev_b32",n,4,n))
    a(salu("s_mul_i32",sT0,sPM,18432)); a(salu("s_mul_i32",sT1,sPM,6144)); a(salu("s_add_u32",sT1,sT1,6144))
    a(valu("v_add_u32",x,sT0,n)); park(a,"xa00",x); a(valu("v_xor_b32",x,64,x)); park(a,"xa10",x)
    a(valu("v_add_u32",x,sT1,n)); park(a,"xa01",x); a(valu("v_xor_b32",x,64,x)); park(a,"xa11",x)
    a(salu("s_mov_b32","vcc_lo",0xaaaaaaaa)); a(salu("s_mov_b32","vcc_hi",0xaaaaaaaa))
    return c
def sU(u): return 16*u if u<=4 else UREG[u]

def w1_dma(slot,flat=False):
    out=[]
    for i in range(6):
        m=salu("s_add_u32","m0",sM1,W1OFF[slot]+4096*(i//4)) if i%4==0 else None
        s=salu("s_add_u32",sT0,sW1O,(i>>1)*24576+(i&1)*3072-1024*(i%4))
        d=dma(DW1,SW1,sT0,off=1024*(i%4))
        out.append((m,s,d))
    adv=salu("s_add_u32",sW1O,sW1O,128)
    if flat: return [x for tr in out for x in tr if x is not None]+[adv]
    return out,adv
def w2_dma(slot):
    out=[]
    for i in range(6):
        m=salu("s_add_u32","m0",sM2,W2S[slot]+4096*(i//4)) if i%4==0 else None
        s=salu("s_add_u32",sW2O,sW2O,4096) if i==4 else None
        d=dma(DW2(i%3),SW2,sW2O,off=1024*(i%4))
        out.append((m,s,d))
    adv=salu("s_add_u32",sW2O,sW2O,24576-4096)
    return out,adv

TR="ds_read_b64_tr_b16"
def conv_chunk(ch,state):
    slot=(ch&1)*5120
    res=[]
    aq=[]
    a0=state["a"]
    for ql in range(16):
        q=16*ch+ql
        aq.append([dsr(TR,AR(a0+len(aq)).sub(2*th,2),CA(th),8*q) for th in range(4)])
        for ti in range(3): res.append((a0+len(aq)-1,CB(ti,ql>>1),ql&1,RES(ti,q)))
    for i in range(4):
        aq.append([dsr(TR,AR(a0+len(aq)).sub(2*th,2),CA12(th),8*(16*ch+i)) for th in range(4)])
        res.append((a0+len(aq)-1,CB12(i>>1),i&1,RES12(4*ch+i)))
    state["a"]=a0+len(aq)
    n=len(res); r0=state["r"]; state["r"]=r0+n
    def bl(r):
        ai,ad,half,_=res[r]
        return [dsr(TR,BR(r0+r).sub(2*th,2),ad,th*RPS+slot+8*half) for th in range(4)]
    def sel(r):
        d=CD(r0+r); dst=res[r][3]
        return [valu("v_cndmask_b32",d.sub(0),d.sub(0),d.sub(1),"vcc"),valu("v_cndmask_b32",d.sub(2),d.sub(2),d.sub(3),"vcc"),
                valu("v_cndmask_b32",dst,d.sub(0),d.sub(2),MB1)]
    AH=NBR-1
    pre=aq[0]+aq[1]
    c=[]
    for r in range(min(AH,n)): c+=bl(r)
    anext=2; apend=[]
    for r in range(n):
        ai=res[r][0]; Af=AR(ai); Bf=BR(r0+r); d=CD(r0+r)
        nb=bl(r+AH) if r+AH<n else []
        if not apend and anext<len(aq) and anext-2<=ai-a0:
            apend=list(aq[anext]); anext+=1
        c.append(mfma(16,d,Af.sub(0,4),Bf.sub(0,4),0))
        c+=nb[:2]
        for _ in range(2 if r>=44 else 1):
            if apend: c.append(apend.pop(0))
        s=sel(r-2) if r>=2 else []
        c+=s[:2]
        c.append(mfma(16,d,Af.sub(4,4),Bf.sub(4,4),d))
        c+=nb[2:]
        for _ in range(2 if r>=44 else 1):
            if apend: c.append(apend.pop(0))
        c+=s[2:]
    assert anext==len(aq) and not apend
    tail=sel(n-2)+[nop(3)]+sel(n-1)
    return pre,c,tail

S_=[V(98,2),V(46,2)]
def pk(op,d,*srcs,mod=""): return valu(op,d,*srcs,mod=mod)
def pair(i,q): return V(RES(i,q).n,2) if i<3 else V(RES12(q).n,2)
def SQ(i): return (V(32+4*i,2),V(34+4*i,2))
def stats_chunk(ch,tiles):
    c=[]
    nq=16
    for k in range(0,nq,2):
        for i in tiles:
            if i==3 and k>=4: continue
            q=(16*ch+k) if i<3 else (4*ch+k)
            S,Q=SQ(i); x=pair(i,q)
            if q==0: c.append(pk("v_pk_mul_f32",Q,x,x))
            else: c.append(pk("v_pk_fma_f32",Q,x,x,Q))
            if q==2: c.append(pk("v_pk_add_f32",S,pair(i,0),x))
            elif q>2: c.append(pk("v_pk_add_f32",S,S,x))
    return c
def spread(c,extra,start,step):
    out=[]; m=0; extra=list(extra)
    for i in c:
        out.append(i)
        if i.kind=="mfma":
            if extra and m>=start and (m-start)%step==0: out+=extra.pop(0)
            m+=1
    for e in extra: out+=e
    return out
def xdma(ch):
    return [[salu("s_add_u32","m0",sM0X(k),5120*(ch&1)),nop(0),dma(XV(k),SX,sT2,aux=XAUX)] for k in range(13)]
def resreads(ch):
    return [[dsr("ds_read2_b64",resfrag(3*s+ch,q),RLA(s,q),mod="offset0:0 offset1:1")] for s in range(3) for q in range(2)]
def conv_all():
    st={"a":0,"r":0}
    p0,c0,t0=conv_chunk(0,st); p1,c1,t1=conv_chunk(1,st); p2,c2,t2=conv_chunk(2,st)
    NE=int(os.environ.get("NEARLY","13"))
    x1=xdma(1)
    w10=w1_dma(0)
    w1l=[[x for x in tr if x is not None] for tr in w10[0]]; w1l[-1].append(w10[1])
    c=[salu("s_movk_i32",sT2,128)]+[i for g in x1[:NE] for i in g]
    c+=[wait(vm=NE),barrier()]+p0
    c0=spread(c0,x1[NE:]+w1l,2,4); c0=spread(c0,resreads(0),60,6)
    bump=lambda d:[valu("v_add_u32",RLA(s,q),d,RLA(s,q)) for s in range(3) for q in range(2)]
    c+=c0+p1+t0+bump(5120)
    c+=[wait(vm=6,lgkm=8),barrier()]
    c.append(salu("s_movk_i32",sT2,256))
    c1=spread(c1,resreads(1),60,6)
    c+=c1[:16]+[i for g in xdma(2) for i in g]+c1[16:]+p2+t1+bump(-5120)
    c+=stats_chunk(0,[0,1,2,3])
    c+=[wait(vm=0,lgkm=8),barrier()]
    c2=spread(c2,resreads(2),60,6)
    c+=c2[:16]+stats_chunk(1,[0,1,2,3])+c2[16:]+t2
    return c

def layernorm():
    c=[]; a=c.append
    RN=[V(48+2*i,2) for i in range(4)]
    t=[V(56+i) for i in range(24)]
    def unpark(name,reg): a(valu("v_accvgpr_read_b32",reg,PARK[name]))
    def reduce(tiles):
        for i in tiles:
            S,Q=SQ(i)
            a(valu("v_add_f32",S.sub(0),S.sub(0),S.sub(1))); a(valu("v_add_f32",S.sub(1),Q.sub(0),Q.sub(1)))
        if len(tiles)==1: a(nop(1))
        for qp in ("[1,0,3,2]","[2,3,0,1]"):
            for i in tiles:
                S,Q=SQ(i)
                for h in (0,1): a(valu("v_add_f32_dpp",S.sub(h),S.sub(h),S.sub(h),mod=f"quad_perm:{qp} row_mask:0xf bank_mask:0xf"))
            if len(tiles)==1: a(nop(1))
    unpark("stw",t[0]); unpark("str",t[1])
    c+=stats_chunk(2,[3]); reduce([3])
    a(dsw("ds_write_b64",t[0],SQ(3)[0]))
    a(wait(lgkm=0)); a(barrier())
    PS=V(72,8); Z=V(80,4)
    a(dsr("ds_read_b128",PS.sub(0,4),t[1])); a(dsr("ds_read_b128",PS.sub(4,4),t[1],16))
    for k in range(12): c+=w1_reads(k,0)
    c+=w1_dma(1,flat=True)
    c+=stats_chunk(2,[0,1,2]); reduce([0,1,2])
    a(valu("v_mov_b64",Z.sub(0,2),0)); a(valu("v_mov_b64",Z.sub(2,2),0)); a(valu("v_lshlrev_b32",t[2],4,L))
    a(dsw("ds_write_b128",t[2],Z,ZB))
    a(pk("v_pk_add_f32",PS.sub(0,2),PS.sub(0,2),PS.sub(2,2))); a(pk("v_pk_add_f32",PS.sub(4,2),PS.sub(4,2),PS.sub(6,2)))
    a(pk("v_pk_add_f32",SQ(3)[0],PS.sub(0,2),PS.sub(4,2)))
    S=[SQ(i)[0] for i in range(4)]; Q=[SQ(i)[1] for i in range(4)]
    for i in range(4): a(valu("v_mul_f32",S[i].sub(0),f32(1/192),S[i].sub(0)))
    for i in range(4): a(valu("v_mul_f32",Q[i].sub(0),S[i].sub(0),S[i].sub(0)))
    a(salu("s_mov_b32",sT1,f32(1/192)))
    for i in range(4):
        x=valu("v_fma_f32",Q[i].sub(0),S[i].sub(1),sT1,Q[i].sub(0)); x.txt=x.txt.replace(f", {Q[i].sub(0)}",f", -{Q[i].sub(0)}"); a(x)
    for i in range(4): a(valu("v_max_f32",Q[i].sub(0),0,Q[i].sub(0)))
    for i in range(4): a(valu("v_add_f32",Q[i].sub(0),f32(1e-5),Q[i].sub(0)))
    for i in range(4): a(valu("v_rsq_f32",Q[i].sub(0),Q[i].sub(0)))
    for ti in range(3): unpark(f"xw{ti}",t[6+ti])
    unpark("x12w",t[9])
    for i in range(4): a(valu("v_mul_f32",RN[i].sub(0),sNA,Q[i].sub(0)))
    for i in range(4):
        x=valu("v_mul_f32_e64",RN[i].sub(1),S[i].sub(0),RN[i].sub(0)); x.txt=x.txt.replace(f", {S[i].sub(0)}",f", -{S[i].sub(0)}"); a(x)
    M="op_sel:[0,0,1] op_sel_hi:[1,0,1]"
    for q in range(0,12,2): a(pk("v_pk_fma_f32",pair(3,q),pair(3,q),RN[3],RN[3],mod=M))
    for ch in range(3):
        for j in range(2): a(valu("v_cvt_pk_bf16_f32",RES12(4*ch+j),RES12(4*ch+2*j),RES12(4*ch+2*j+1)))
    for ch in range(3): a(dsw("ds_write_b64",t[9],V(RES12(4*ch).n,2),512*ch))
    for kp in range(6):
        for ti in range(3):
            for q in range(8*kp,8*kp+8,2): a(pk("v_pk_fma_f32",pair(ti,q),pair(ti,q),RN[ti],RN[ti],mod=M))
            for j in range(4): a(valu("v_cvt_pk_bf16_f32",RES(ti,8*kp+j),RES(ti,8*kp+2*j),RES(ti,8*kp+2*j+1)))
            a(dsw("ds_write_b128",t[6+ti],V(RES(ti,8*kp).n,4),2048*kp))
    for p_ in range(2):
        for h in range(2): unpark(f"xa{p_}{h}",XA(p_,h))
    unpark("x12a",X12A)
    a(wait(lgkm=0)); a(barrier())
    return c
def XA(p,h): return V(108+2*p+h)
X12A=V(96)
def xread(s,k): return dsr("ds_read_b128",XF(s,k),XA(k&1,int(k>=6)),XEX(2*s)+(k%6)*1024)
def resfrag(tl,q):
    f=2*tl+q
    if f<10: return XF(2,f)
    f-=10
    return A(216+4*f,4) if f<6 else A(248+4*(f-6),4)

def w1_reads(k,slot):
    return [dsr(TR,W1F(k).sub(2*rd,2),W1LO if k<6 else W1HI,(32*(k>>1)+16*rd+8*(k&1))*128+W1OFF[slot]) for rd in range(2)]
def w2_reads(dst,k,lct,slot):
    return [dsr(TR,dst.sub(2*rd,2),W2A(k>>1),(16*k+8*rd)*384+128*lct+W2S[slot]-(12288 if k>=2 else 0)) for rd in range(2)]

def gelu_group(src,gi,stg,extra=None):
    ts=[GT(4*(gi%2)+j) for j in range(4)]; xs=[src.sub(j) for j in range(4)]
    if extra: xs=xs+[extra[0]]; ts=ts+[extra[1]]
    n=len(xs); f=[]
    for j in range(n): f.append(valu("v_fmaak_f32",ts[j],xs[j],xs[j],f32(CC)))
    for j in range(n): f.append(valu("v_mul_f32",ts[j],ts[j],xs[j]))
    for j in range(n): f.append(valu("v_exp_f32",ts[j],ts[j]))
    for j in range(n): f.append(valu("v_fma_f32",ts[j],ts[j],sNA,sNA))
    for j in range(n): f.append(valu("v_rcp_f32",ts[j],ts[j]))
    for j in range(n): f.append(valu("v_mul_f32",ts[j],ts[j],xs[j]))
    f.append(valu("v_cvt_pk_bf16_f32",stg.sub(0),ts[0],ts[1])); f.append(valu("v_cvt_pk_bf16_f32",stg.sub(1),ts[2],ts[3]))
    if extra: f.append(valu("v_cvt_pk_bf16_f32",extra[1],extra[1],extra[1]))
    return f

class Op:
    def __init__(s,inst,lo=0,hi=10**6,then=None,pre=None): s.i=inst; s.lo=lo; s.hi=hi; s.then=then; s.pre=pre
def schedule(M,vs,mem,sal,memcap=1,thens=None):
    n=len(M); out=[]; vs=list(vs); mem=list(mem); rel=[]; thens=dict(thens or {})
    def rem(): return sum(o.i.cost+(o.then.i.cost if o.then else 0) for o in vs)+sum(o.i.cost for o in mem+rel+list(thens.values()))
    quiet=-1
    for g in range(n):
        wsum=sum(m.passes for m in M[g:])
        budget=(rem()+8*(n-g))*M[g].passes/wsum
        out.append(M[g]); acc=8
        for k,s in enumerate(sal.get(g,[])):
            out.append(s); acc+=4 if k else 0
        if g in thens: rel.append(thens.pop(g))
        k=0
        for o in [o for o in rel if o.lo<=g][:1]:
            out.append(o.i); acc+=o.i.cost; rel.remove(o); k+=memcap; quiet=g+QUIET
        av=sorted([o for o in mem if o.lo<=g],key=lambda o:o.hi)
        for idx,o in enumerate(av):
            urgent=any(sum(1 for x in mem if x.hi<=y.hi)>(y.hi-g-1)*memcap for y in av[idx:idx+6] if y in mem)
            if o.hi>g+1 and not urgent and (k>=memcap or g<=quiet): break
            if k>=max(2,memcap) and o.hi>g+1: break
            out.append(o.i); acc+=o.i.cost; mem.remove(o); k+=1
        force=max([i for i,o in enumerate(vs) if o.hi<=g+1],default=-1)
        cnt=0
        while vs and vs[0].lo<=g and (cnt<=force or acc+vs[0].i.cost/2<=budget):
            o=vs.pop(0); out.append(o.i); acc+=o.i.cost; cnt+=1
            if o.then: o.then.lo=max(o.then.lo,g+1); rel.append(o.then)
        assert cnt>force,("valu deadline",g)
    assert not mem and not thens,(len(mem),)
    for o in vs:
        out.append(o.i)
        if o.then: rel.append(o.then)
    for o in rel: out.append(o.i)
    return out

LEAD=int(os.environ.get("LEAD","4")); QUIET=int(os.environ.get("QUIET","1"))
def interval(j):
    p=j%2; first=(j==0); last=(j==11)
    M=[]; pos={}; gi={}; w1use={}; w2last={}; thens={}
    def g1(s,buf,t12=False):
        pos[f"b{s}"]=len(M)
        for k in range(12):
            w1use[(s,k)]=len(M); M.append(mfma(32,D(buf),W1F(k),XF(s,k),D(buf) if k else 0))
            if t12 and k%2==1:
                M.append(mfma(16,D12,W1F(k//2),X12F(k//2),D12 if k>1 else 0))
        pos[f"e{s}"]=len(M)
        if t12: thens[len(M)+2]=Op(dsw("ds_write_b128",P12W,D12,P12+4096*(1-p)))
    def g2(a_,b_):
        for i in range(a_,b_):
            gi[i]=len(M)
            if first:
                tl,q=i//2,i%2; M.append(mfma(32,ACC(tl//3,tl%3),IDF(q),resfrag(tl,q),ACC(tl//3,tl%3) if q else 0))
            else:
                k,l,s=i//9,(i//3)%3,i%3
                M.append(mfma(32,ACC(s,l),W2F(3*k+l),HF(3*k+s),ACC(s,l)))
                if k<2 and s==1: gi[("t",3*k+l)]=len(M); M.append(mfma(16,ACC12(l),W2F(3*k+l),H12F(k),ACC12(l)))
    cuts=[10,14,18] if first else [12,24,36]
    g1(1,1-p); g2(0,cuts[0]); g1(2,p); g2(cuts[0],cuts[1])
    if not last: g1(0,1-p,True)
    g2(cuts[1],cuts[2])
    n=len(M)
    mem=[]; sal={}
    if not first:
        for ph in range(12):
            lo=0 if ph<4 else gi[3*(ph-4)+2]
            for x in w2_reads(W2F(ph),ph//3,ph%3,1-p): mem.append(Op(x,lo,gi[3*ph]-LEAD+1))
        for k in range(4):
            for s in range(3):
                lo=0 if k<2 else gi[9*(k-2)+6+s]
                mem.append(Op(dsr("ds_read_b128",HF(3*k+s),HR,HOFF[1-p]+(4*s+k)*1024),lo,gi[9*k+s]-LEAD+1))
        for k in range(2): mem.append(Op(dsr("ds_read_b128",H12F(k),H12R,512*(1-p)+128*k),0,gi[("t",3*k)]-LEAD+1))
    else:
        for k in range(XPRE,12): mem.append(Op(xread(1,k),0,max(1,k-LEAD+1)))
        for k in range(12): mem.append(Op(xread(2,k),gi[k] if k<10 else 0,pos["b2"]+k-LEAD+1))
    mem.append(Op(dsr("ds_read2st64_b32",T12T.sub(0,2),P12R,mod=f"offset0:{16*p} offset1:{16*p+4}"),0,3))
    if not last:
        for k in range(12):
            for x in w1_reads(k,1-p): mem.append(Op(x,w1use[(2,k)],w1use[(0,k)]-LEAD+1))
    lists=[]
    if not last: lists.append(w1_dma(p))
    lists.append(w2_dma(p))
    step=int(os.environ.get("DSTEP","5"))
    if first: step=3
    g=1
    for tr,adv in lists:
        for m,s,d in tr:
            if m is not None: sal.setdefault(g-1,[]).append(m)
            if s is not None: sal.setdefault(g,[]).append(s)
            mem.append(Op(d,g,g+1)); g+=step
        sal.setdefault(g-step+1,[]).append(adv)
    vs=[]; gc=[1]
    def grp(s,buf,g,lo,hi,hb,extra=None):
        fr=g>>1; stg=STG(fr)
        ops=gelu_group(D(buf).sub(4*g,4),gc[0],stg.sub(2*(g&1),2),extra); gc[0]+=1
        o=[Op(x,lo,hi) for x in ops]
        k=-2 if extra else -1
        if g&1: o[k].then=Op(dsw("ds_write_b128",HW,stg,HOFF[hb]+(4*s+fr)*1024))
        if extra: o[-1].then=Op(dsw("ds_write_b16",H12W,extra[1],512*p))
        return o
    if first:
        for l in range(3):
            for h in range(2): vs.append(Op(valu("v_mov_b64",ACC12(l).sub(2*h,2),0)))
    vs+=grp(0,p,1,0,pos["b2"],p)
    vs+=[Op(valu("v_add_f32",T12T.sub(0),T12T.sub(0),T12T.sub(1)),4)]
    vs+=grp(0,p,2,0,pos["b2"],p,extra=(T12T.sub(0),T12T.sub(1)))
    vs+=grp(0,p,3,0,pos["b2"],p)
    for g_ in range(4): vs+=grp(1,1-p,g_,pos["e1"]+2,pos.get("b0",10**6),p)
    for g_ in range(4): vs+=grp(2,p,g_,pos["e2"]+2,(n-3) if not last else 10**6,p)
    if not last: vs+=grp(0,1-p,0,pos["e0"]+2,10**6,1-p)
    KO=os.environ.get("KO","").split(",")
    if "dma" in KO: mem=[o for o in mem if o.i.kind!="dma"]
    if "dsw" in KO:
        for o in vs: o.then=None
    if "dsr" in KO: mem=[o for o in mem if o.i.kind!="dsr"]
    c=schedule(M,vs,mem,sal,thens=thens)
    return c

XPRE=6
def pre_interval():
    M=[]
    for k in range(12): M.append(mfma(32,D(0),W1F(k),XF(0,k),D(0) if k else 0))
    for k in range(6): M.append(mfma(16,D12,W1F(k),X12F(k),D12 if k else 0))
    c=[xread(0,k) for k in range(6)]
    mem=[Op(xread(0,k),0,k-3) for k in range(6,12)]
    for k in range(6): mem.append(Op(dsr("ds_read_b128",X12F(k),X12A,128*k),0,9))
    for k in range(XPRE): mem.append(Op(xread(1,k),0,12))
    gl=[Op(x,16) for x in gelu_group(D(0).sub(0,4),0,STG(0).sub(0,2))]
    gl[-8].then=Op(dsw("ds_write_b128",P12W,D12,P12))
    c+=schedule(M,gl,mem,{},memcap=2)
    c+=[wait(vm=0,lgkm=0),barrier()]
    return c

def final():
    c=[]; a=c.append
    p=1
    def WF(k,l): return W1F(3*k+l)
    M=[]; end={}; thens={}
    A12W=V(110)
    for s in range(3):
        for l in range(3):
            for k in range(4): M.append(mfma(32,ACC(s,l),WF(k,l),XF(0,4*s+k),ACC(s,l)))
            end[(s,l)]=len(M)
            if s==0:
                for k in range(2): M.append(mfma(16,ACC12(l),WF(k,l),H12F(k),ACC12(l)))
                thens[len(M)+3]=Op(dsw("ds_write_b128",A12W,ACC12(l),4096*l))
    def hr(s,k): return dsr("ds_read_b128",XF(0,4*s+k),HR,HOFF[p]+(4*s+k)*1024)
    R12=V(108,2)
    for k in range(4): c+=w2_reads(WF(k,0),k,0,p)+[hr(0,k)]
    a(bload(2,R12,R12V,SX,sTB))
    mem=[]
    for k in range(2): mem.append(Op(dsr("ds_read_b128",H12F(k),H12R,512*p+128*k),0,1))
    for l in (1,2):
        for k in range(4):
            for x in w2_reads(WF(k,l),k,l,p): mem.append(Op(x,0,6*l+k-3))
    for s in (1,2):
        for k in range(4): mem.append(Op(hr(s,k),0,14))
    vs=[Op(valu("v_lshlrev_b32",A12W,4,L)),Op(valu("v_add_u32",A12W,sT0,A12W))]
    sal={0:[salu("s_lshl_b32",sT0,sHN,1),salu("s_add_u32",sT0,sT0,sPM),salu("s_lshl_b32",sT0,sT0,10)]}
    def epi(s,l,lo):
        o=[]
        for q in range(2):
            r=ACC(s,l)
            for j in range(4): o.append(Op(valu("v_cvt_pk_bf16_f32",r.sub(8*q+j),r.sub(8*q+2*j),r.sub(8*q+2*j+1)),lo))
            o[-1].then=Op(dsw("ds_write_b128",OSW(s),r.sub(8*q,4),128*l+32*q))
        return o
    SB=[V(48+4*i,4) for i in range(8)]
    sRow,sRow2="s70","s71"; RA=[V(32+i) for i in range(3)]
    def row_setup(r0):
        return [salu("s_add_u32",sT0,sW,r0),salu("s_mul_i32",sRow,sT0,ROWB),salu("s_add_u32",sRow,sRow,sTB),salu("s_add_u32",sRow2,sRow,2688),
                salu("s_mul_i32",sT0,sT0,5600)]+[valu("v_add_u32",RA[k],sT0,OSR(k)) for k in range(3)]
    def row_ops(b0):
        rd=[dsr("ds_read_b128",SB[(b0+k)%8],RA[k%3],2800*(k//3)) for k in range(6)]
        st=[bstore(4,SB[(b0+k)%8],L16S,SOUT,sRow if k<3 else sRow2,off=896*(k%3),aux=STAUX) for k in range(6)]
        return rd,st
    C1,C2=24,36
    for l in range(3): vs+=epi(0,l,end[(0,l)]+3)
    c+=schedule(M[:C1],vs,mem,sal,memcap=3,thens=thens)
    c+=row_setup(0)
    c+=[wait(lgkm=0),barrier()]
    rd,st=row_ops(0)
    PT=V(84,8)
    mem=[Op(x,0,2) for x in rd]+[Op(x,3+i,4+i) for i,x in enumerate(st)]
    mem+=[Op(dsr("ds_read_b128",PT.sub(4*i,4),A12R,1024*i),0,3) for i in range(2)]
    vs=[]
    t12=[]
    for j in range(4): t12.append(valu("v_add_f32",PT.sub(j),PT.sub(j),PT.sub(4+j)))
    for j in range(2):
        t12.append(valu("v_lshlrev_b32",PT.sub(4+2*j),16,R12.sub(j))); t12.append(valu("v_and_b32",PT.sub(5+2*j),0xffff0000,R12.sub(j)))
    for j in range(4): t12.append(valu("v_add_f32",PT.sub(j),PT.sub(j),PT.sub(4+j)))
    t12+=[valu("v_cvt_pk_bf16_f32",PT.sub(0),PT.sub(0),PT.sub(1)),valu("v_cvt_pk_bf16_f32",PT.sub(1),PT.sub(2),PT.sub(3))]
    t12=[Op(x,5) for x in t12]; t12[-1].then=Op(dsw("ds_write_b64",O12W,PT.sub(0,2)))
    vs+=epi(1,0,max(0,end[(1,0)]+3-C1))+epi(1,1,end[(1,1)]+3-C1)+t12+epi(1,2,end[(1,2)]+3-C1)
    c+=schedule(M[C1:C2],vs,mem,{},memcap=3)
    c+=row_setup(4)
    c+=[wait(lgkm=0),barrier()]
    rd,st=row_ops(6)
    mem=[Op(x,0,2) for x in rd]+[Op(x,3+i//2,4+i//2) for i,x in enumerate(st)]
    vs=epi(2,0,end[(2,0)]+3-C2)+epi(2,1,end[(2,1)]+3-C2)
    c+=schedule(M[C2:],vs,mem,{},memcap=3)
    RB=[V(36+i) for i in range(3)]; sR3="s72"
    c+=row_setup(8)
    c+=[salu("s_mul_i32",sT0,sPM,ROWB),salu("s_mul_i32",sT1,sHN,2688),salu("s_add_u32",sR3,sT0,sT1),salu("s_add_u32",sR3,sR3,sTB),salu("s_add_u32",sR3,sR3,12*ROWB),
        salu("s_mul_i32",sT0,sW,2800),salu("s_add_u32",sT0,sT0,12*5600)]
    c+=[valu("v_add_u32",RB[k],sT0,OSR(k)) for k in range(3)]
    for o in epi(2,2,0):
        c.append(o.i)
        if o.then: c.append(o.then.i)
    c+=[wait(lgkm=0),barrier()]
    rd,st=row_ops(4)
    c+=rd
    SC=[V(84+4*i,4) for i in range(3)]
    c+=[dsr("ds_read_b128",SC[k],RB[k]) for k in range(3)]
    c+=st
    c+=[bstore(4,SC[k],L16S,SOUT,sR3,off=896*k,aux=STAUX) for k in range(3)]
    return c

NST=[0]
def stamp():
    k=NST[0]; NST[0]+=1
    return [raw("s_memtime s[92:93]"),wait(lgkm=0),raw(f"s_sub_u32 s{74+k}, s92, s94")]
def add_stamps(code):
    out=[]
    for i in code:
        out.append(i)
        if i.kind=="barrier": out+=stamp()
    return out
def dump_stamps():
    c=[wait(vm=0)]+stamp()
    c+=[raw("s_memrealtime s[92:93]"),raw("s_load_dwordx2 s[4:5], s[0:1], 48"),wait(lgkm=0),raw(f"s_sub_u32 s{74+NST[0]}, s92, s95"),
        raw("s_mov_b32 s6, 0x1000000"),raw("s_mov_b32 s7, 0x20000"),raw("s_lshl_b32 s8, s2, 2"),raw(f"s_add_u32 s8, s8, {sW}"),raw("s_lshl_b32 s8, s8, 7"),raw("v_mov_b32 v1, s8")]
    for k in range(NST[0]+1):
        c+=[raw(f"v_mov_b32 v2, s{74+k}"),raw(f"buffer_store_dword v2, v1, s[4:7], 0 offen offset:{4*k}")]
    if DBG=="2":
        c+=[raw("s_load_dwordx2 s[4:5], s[0:1], 40"),wait(lgkm=0),raw("s_mov_b32 s6, 64"),raw("s_sub_u32 s8, s8, 51200"),raw("v_mov_b32 v1, s8")]
        for k in range(NST[0]+1):
            c+=[raw(f"v_mov_b32 v2, s{74+k}"),raw(f"buffer_store_dword v2, v1, s[4:7], 0 offen offset:{4*k}")]
    if os.environ.get("PADTO"):
        c+=[label("L_PAD"),raw("s_sleep 4"),raw("s_memrealtime s[92:93]"),wait(lgkm=0),raw("s_sub_u32 s92, s92, s95"),raw(f"s_cmp_lt_u32 s92, {os.environ['PADTO']}"),raw("s_cbranch_scc1 L_PAD")]
    print("nstamps",NST[0]+1,file=sys.stderr)
    return c
def endint(): return [wait(vm=0,lgkm=0),barrier()]

def build():
    segs=[]
    pro=prologue(); cv=conv_all(); ln=layernorm(); pre=pre_interval()
    i0=interval(0)+endint()
    head=fix_hazards(insert_waits(pro+cv+ln+pre+i0))
    i1=insert_waits(interval(1)+endint()); i2=insert_waits(interval(2)+[salu("s_sub_u32",sCNT,sCNT,1),salu("s_cmp_lg_u32",None,sCNT,0)]+endint())
    i11=insert_waits(interval(11)+endint()); fin=fix_hazards(insert_waits(final()))
    errs=check_hazards(head+i1+i2+i1+i2+i11+fin,"all")
    for e in errs[:40]: print(e,file=sys.stderr)
    for nm,s in (("pro",pro),("conv",insert_waits(cv)),("ln",ln),("pre",insert_waits(pre)),("i0",insert_waits(i0)),("i1",i1),("i2",i2),("i11",i11),("fin",fin)):
        print(f"{nm}: {len(s)} insts est {est_cycles(s)} cyc",file=sys.stderr)
    if DBG:
        st0=[raw("s_memtime s[92:93]"),raw("s_memrealtime s[90:91]"),wait(lgkm=0),raw("s_mov_b32 s94, s92"),raw("s_mov_b32 s95, s90")]
        head=head[:2]+st0+add_stamps(head[2:]); i11=stamp()+add_stamps(i11); fin=add_stamps(fin)+dump_stamps()
    code=head+[salu("s_mov_b32",sCNT,5),raw(".p2align 6","label",0),label("L_LOOP")]+i1+i2+[raw("s_cbranch_scc1 L_LOOP")]+i11+fin+[label("L_END")]
    return code,errs

HDR=open("standalone__convnext_block__vision.s.ref").read()
def emit(code,path):
    head=HDR[:HDR.index("; @launch")]
    s=head+"; @launch grid=(256,1,1) block=(256,1,1) lds=163840\n"
    s+='''.amdgcn_target "amdgcn-amd-amdhsa--gfx950"
.text
.globl standalone__convnext_block__vision_kernel
.p2align 8
.type standalone__convnext_block__vision_kernel,@function
standalone__convnext_block__vision_kernel:
'''
    for i in code: s+=("" if i.kind=="label" else "    ")+i.txt+"\n"
    s+='''s_endpgm
.section .rodata,"a"
.p2align 6
.amdhsa_kernel standalone__convnext_block__vision_kernel
  .amdhsa_next_free_vgpr 512
  .amdhsa_next_free_sgpr 96
  .amdhsa_accum_offset 256
  .amdhsa_group_segment_fixed_size 0
  .amdhsa_kernarg_size 56
  .amdhsa_user_sgpr_count 2
  .amdhsa_user_sgpr_kernarg_segment_ptr 1
  .amdhsa_system_sgpr_workgroup_id_x 1
.end_amdhsa_kernel
'''
    open(path,"w").write(s)
if __name__=="__main__":
    code,errs=build()
    out=sys.argv[1] if len(sys.argv)>1 else "standalone__convnext_block__vision.s"
    emit(code,out)
    print("hazard errors:",len(errs),file=sys.stderr)
```

```python
import struct, sys, math, os
from isa import *
def f32(x): return struct.unpack('<I', struct.pack('<f', x))[0]
K1=2*math.sqrt(2/math.pi)*math.log2(math.e); K3=K1*0.044715; AA=K3**(1/3); CC=K1/AA
ROWB=86016; XSZ=19267584
W2S=[0,24576]; P12=49152; H12=57344; HBASE=59392; HOFF=[24576,0]; W1BASE=114688; W1OFF=[24576,0]
OS=83968; RPS=10240; DWB=102400; ZB=58368; STB=97280; DUMMY=122880
def XEX(tau): return tau*12288+(10240 if tau>=4 else 0)
L=V(0)
W1LO,W1HI=V(1),V(2)
def W2A(hi): return V(3+hi)
def RLA(s,q): return V(22+s) if q==0 else V(5+s)
HW,HR,P12W,P12R,H12W,H12R=V(9),V(10),V(11),V(12),V(13),V(14)
DW1=V(15)
def DW2(k): return V(16+k)
def OSW(s): return V(19+s)
def OSR(k): return V(25+k)
L16S=V(28); A12R,R12V,O12W=V(29),V(30),V(31)
def GT(i): return V(32+i)
def STG(b): return V(40+4*b,4)
def D(b): return V(48+16*b,16)
D12=V(80,4)
def ACC12(l): return V(84+4*l,4)
T12T=V(96,4)
def H12F(k): return V(100+4*k,4)
def ACC(s,l): return V(112+16*(3*s+l),16)
def XF(s,k): return A(48*s+4*k,4)
def W1F(k): return A(144+4*k,4)
def X12F(k): return A(192+4*k,4)
def HF(i): return A(216+4*(i%6),4)
def W2F(i): return A(240+4*(i%4),4)
def IDF(q): return A(240+4*q,4)
def RES(R,k): return V(88+24*R+k)
def CD(i): return V(48+4*(i%4),4)
def CB(ui,hi): return V(64+2*ui+hi)
def CA(th): return V(72+th)
def XV(k): return V(32+k)
def BETA(i): return A(20*(i%2),20)
def AR(i): return A(64+8*(i%2),8)
NAV=V(8)
SX,SDW,SW1,SW2,SOUT="s[16:19]","s[20:23]","s[24:27]","s[28:31]","s[32:35]"
sW,sPM,sHN,sY0,sX0,sXB,sTB="s36","s37","s38","s39","s40","s41","s42"
sHH="s43"; MB1="s[44:45]"; MB2="s[70:71]"
def sM0X(k): return f"s{46+k}"
sCNT,sW1O,sW2O,sT0,sT1,sM1,sM2="s60","s61","s62","s63","s64","s65","s66"
sNA="s67"; sT2,sT3="s68","s69"
UREG={5:"s70",6:"s71",7:"s72"}
XAUX=os.environ.get("XAUX","")
STAUX=os.environ.get("STAUX","sc1")
DBG=os.environ.get("DBG","")

PARK={}
def park(a,name,reg):
    PARK[name]=A(192+len(PARK)); a(valu("v_accvgpr_write_b32",PARK[name],reg))
def prologue():
    c=[]; a=c.append
    a(salu("s_cmp_ge_u32",None,"s2",256)); a(raw("s_cbranch_scc1 L_END"))
    for i,r in enumerate((16,20,24,28,32)):
        a(I(f"s_load_dwordx2 s[{r}:{r+1}], s[0:1], {8*i}","salu"))
    t=[V(200+i) for i in range(40)]
    a(valu("v_lshrrev_b32",t[0],6,L))
    a(valu("v_lshrrev_b32",t[1],3,L))
    a(valu("v_readfirstlane_b32",sW,t[0],kind="rfl"))
    a(valu("v_and_b32",t[2],7,L))
    a(valu("v_and_b32",L,63,L))
    a(salu("s_lshr_b32",sY0,"s2",6))
    a(salu("s_lshl_b32",sT0,"s2",1)); a(salu("s_and_b32",sT0,sT0,12)); a(salu("s_add_u32",sY0,sY0,sT0))
    a(salu("s_bfe_u32",sX0,"s2",0x30003))
    a(salu("s_lshl_b32",sT0,"s2",3)); a(salu("s_and_b32",sT0,sT0,8)); a(salu("s_add_u32",sX0,sX0,sT0))
    a(salu("s_mul_i32",sTB,sY0,14*ROWB)); a(salu("s_mul_i32",sX0,sX0,14))
    a(salu("s_mul_i32",sT0,sX0,384)); a(salu("s_add_u32",sTB,sTB,sT0))
    a(salu("s_sub_u32",sXB,sTB,3*ROWB+3*384))
    a(salu("s_sub_u32",sX0,sX0,3))
    a(salu("s_mov_b32","s18",XSZ)); a(salu("s_mov_b32","s19",0x20000))
    a(salu("s_mov_b32",sT2,-20)); a(salu("s_movk_i32",sT3,384))
    a(valu("v_mov_b32",t[3],0x80000000))
    first=True
    for k in range(5):
        p,row,col,x,y=t[4],t[5],t[6],t[7],t[8]
        if k: a(valu("v_add_u32",p,32*k,t[1]))
        else: p=t[1]
        a(valu("v_mul_u32_u24",row,0xccd,p)); a(valu("v_lshrrev_b32",row,16,row))
        a(valu("v_mad_i32_i24",col,row,sT2,p))
        a(valu("v_add_u32",x,sX0,col)); a(valu("v_cmp_gt_u32","vcc",224,x))
        a(valu("v_bfe_u32",x,col,1,3)); a(valu("v_xor_b32",x,x,t[2]))
        a(valu("v_mul_u32_u24",y,ROWB,row)); a(valu("v_mad_u32_u24",y,col,sT3,y))
        a(valu("v_lshl_add_u32",y,x,4,y)); a(valu("v_add_u32",y,sXB,y))
        a(valu("v_cndmask_b32",XV(k),t[3],y,"vcc"))
        a(valu("v_add_u32",XV(k+5),8*ROWB,XV(k)))
        a(salu("s_add_u32",sT0,sW,4*k)); a(salu("s_mul_i32",sT1,sT0,205)); a(salu("s_lshr_b32",sT1,sT1,10))
        a(salu("s_mul_i32",sT1,sT1,RPS-5120)); a(salu("s_lshl_b32",sT0,sT0,10)); a(salu("s_add_u32",sM0X(k),sT0,sT1))
        a(salu("s_add_u32",sM0X(k+5),sM0X(k),4*RPS))
        if k<2:
            a(valu("v_add_u32",XV(k+10),16*ROWB,XV(k))); a(salu("s_add_u32",sM0X(k+10),sM0X(k),8*RPS))
        if k==2:
            a(salu("s_add_u32",sT0,sM0X(2),8*RPS))
            a(salu("s_cmp_lt_u32",None,sW,2))
            a(salu("s_cselect_b32",sT1,16*ROWB,0x40000000))
            a(salu("s_cselect_b32",sM0X(12),sT0,DUMMY))
            a(valu("v_add_u32",XV(12),sT1,XV(2)))
        if first: a(wait(lgkm=0)); first=False
        for kk in (k,k+5,k+10):
            if kk<=12:
                a(salu("s_mov_b32","m0",sM0X(kk))); a(nop(0)); a(dma(XV(kk),SX,0,aux=XAUX))
    a(salu("s_mov_b32","s22",18816)); a(salu("s_mov_b32","s23",0x20000))
    a(salu("s_mul_i32",sT0,sW,320)); a(valu("v_add_u32",t[4],sT0,L))
    a(salu("s_mul_i32",sT1,sW,5120)); a(salu("s_add_u32",sT1,sT1,DWB))
    for i in range(5):
        U,tp=t[5],t[6]
        a(valu("v_add_u32",U,64*i,t[4])); a(valu("v_mul_u32_u24",tp,0xa3e,U)); a(valu("v_lshrrev_b32",tp,16,tp))
        a(valu("v_sub_u32",U,U,tp)); a(valu("v_lshlrev_b32",t[10+i],4,U))
        a(salu("s_add_u32","m0",sT1,1024*i)); a(nop(0)); a(dma(t[10+i],SDW,0))
    a(salu("s_mov_b32","s26",294912)); a(salu("s_mov_b32","s27",0x20000))
    a(salu("s_mov_b32","s30",294912)); a(salu("s_mov_b32","s31",0x20000))
    a(salu("s_mov_b32","s34",XSZ)); a(salu("s_mov_b32","s35",0x20000))
    a(salu("s_lshr_b32",sPM,sW,1)); a(salu("s_and_b32",sHN,sW,1)); a(salu("s_xor_b32",sHH,sPM,sHN))
    a(salu("s_mov_b32",sNA,f32(-AA)))
    a(salu("s_mov_b32","s44",0xcccccccc)); a(salu("s_mov_b32","s45",0xcccccccc))
    cS,rp,g,g0,g1,l16=t[0],t[1],t[2],t[3],t[4],t[5]
    a(valu("v_and_b32",cS,3,L)); a(valu("v_bfe_u32",rp,L,2,2)); a(valu("v_lshrrev_b32",g,4,L))
    a(valu("v_and_b32",g0,1,g)); a(valu("v_lshrrev_b32",g1,5,L)); a(valu("v_lshlrev_b32",l16,4,L))
    lp,j,b=t[6],t[9],t[15]
    a(valu("v_mul_u32_u24",lp,20,g1)); a(valu("v_add_u32",lp,lp,g0)); a(valu("v_lshlrev_b32",lp,7,lp))
    a(salu("s_lshl_b32",sT0,sPM,2)); a(salu("s_lshl_b32",sT1,sHN,6))
    a(valu("v_add_u32",j,sT0,cS)); a(valu("v_min_u32",j,6,j)); a(valu("v_add_u32",j,j,rp))
    a(valu("v_lshl_add_u32",b,j,8,lp)); a(valu("v_and_b32",j,7,j)); a(valu("v_lshl_add_u32",b,j,4,b)); a(valu("v_xor_b32",CB(0,0),sT1,b))
    for ui in range(1,4): a(valu("v_xor_b32",CB(ui,0),16*ui,CB(0,0)))
    for ui in range(4): a(valu("v_add_u32",CB(ui,1),5*RPS,CB(ui,0)))
    oh,ow,jj,i0,tp=t[7],t[8],t[9],t[15],t[16]
    a(valu("v_lshrrev_b32",oh,1,cS)); a(valu("v_and_b32",ow,1,cS))
    a(valu("v_lshl_add_u32",jj,rp,1,g0)); a(valu("v_sub_u32",jj,jj,ow)); a(valu("v_sub_u32",i0,g1,oh))
    a(salu("s_movk_i32",sT3,400)); a(salu("s_add_u32",sT0,sT1,DWB)); a(valu("v_mov_b32",t[18],sT0)); a(salu("s_add_u32",sT0,sT0,19600))
    for th in range(4):
        ii,z=t[17],t[19]
        a(valu("v_add_u32",ii,2*th,i0)); a(valu("v_mad_i32_i24",tp,ii,7,jj))
        a(valu("v_max_u32",ii,ii,jj)); a(valu("v_cmp_gt_u32","vcc",7,ii))
        a(valu("v_mad_u32_u24",tp,tp,sT3,t[18]))
        a(valu("v_sub_u32",z,22-2*th,g1)); a(valu("v_and_b32",z,15,z)); a(valu("v_lshl_add_u32",z,z,4,sT0))
        a(valu("v_cndmask_b32",CA(th),z,tp,"vcc"))
    lam,up,x,y=t[7],t[8],t[9],t[15]
    a(valu("v_lshrrev_b32",lam,3,L)); a(valu("v_and_b32",up,7,L))
    a(valu("v_and_b32",x,3,lam)); a(valu("v_lshlrev_b32",x,2,x)); a(valu("v_add_u32",x,x,g1))
    a(valu("v_mul_u32_u24",x,1536,x))
    a(valu("v_lshlrev_b32",y,2,g0)); a(valu("v_xor_b32",y,y,up)); a(valu("v_lshl_add_u32",DW1,y,4,x))
    for k in range(3):
        a(valu("v_add_u32",x,64*k,L)); a(valu("v_mul_u32_u24",x,0xaab,x)); a(valu("v_bfe_u32",x,x,17,1))
        a(valu("v_lshlrev_b32",x,6,x)); a(valu("v_xor_b32",DW2(k),x,l16))
    a(salu("s_mul_i32",sW1O,sW,73728)); a(salu("s_mul_i32",sW2O,sW,6144))
    a(salu("s_add_u32",sM1,sW2O,W1BASE)); a(salu("s_mov_b32",sM2,sW2O))
    hb,pc,x,y,z=t[7],t[8],t[9],t[15],t[16]
    a(valu("v_lshrrev_b32",hb,1,rp))
    a(valu("v_lshl_add_u32",x,g1,2,rp))
    a(valu("v_xor_b32",y,sHH,hb)); a(valu("v_lshlrev_b32",y,6,y)); a(valu("v_lshl_add_u32",y,x,7,y))
    a(valu("v_lshl_add_u32",y,g0,5,y)); a(valu("v_lshl_add_u32",y,cS,3,y))
    a(salu("s_mul_i32",sT0,sPM,12288)); a(salu("s_add_u32",sT1,sT0,W1BASE)); a(salu("s_sub_u32",sT2,W1BASE,sT0))
    a(valu("v_add_u32",W1LO,sT1,y)); a(valu("v_add_u32",W1HI,sT2,y))
    a(valu("v_and_b32",pc,1,cS)); a(valu("v_lshlrev_b32",pc,1,pc)); a(valu("v_lshrrev_b32",z,1,cS)); a(valu("v_add_u32",pc,pc,z))
    a(valu("v_mul_u32_u24",y,384,x)); a(valu("v_lshl_add_u32",y,g0,5,y)); a(valu("v_lshl_add_u32",y,pc,3,y))
    a(valu("v_xor_b32",z,sHN,hb)); a(valu("v_lshl_add_u32",z,z,6,y))
    a(salu("s_sub_u32",sT1,12288,sT0))
    a(valu("v_add_u32",W2A(0),sT0,z)); a(valu("v_add_u32",W2A(1),sT1,z))
    a(salu("s_add_u32",sT1,sT0,HBASE)); a(valu("v_add_u32",HR,sT1,l16))
    a(salu("s_lshl_b32",sT2,sHN,11)); a(valu("v_add_u32",HW,sT2,HR))
    a(salu("s_lshl_b32",sT1,sHH,1)); a(salu("s_add_u32",sT1,sT1,sPM)); a(salu("s_lshl_b32",sT1,sT1,10)); a(valu("v_add_u32",P12W,sT1,l16))
    gc=t[20]
    a(valu("v_lshl_add_u32",gc,g,4,cS)); a(valu("v_lshlrev_b32",gc,4,gc)); a(valu("v_lshl_add_u32",x,rp,2,gc))
    a(salu("s_lshl_b32",sT1,sHH,11)); a(salu("s_lshl_b32",sT2,sPM,6)); a(salu("s_add_u32",sT1,sT1,sT2)); a(salu("s_add_u32",sT1,sT1,P12))
    a(valu("v_add_u32",P12R,sT1,x))
    a(valu("v_lshlrev_b32",x,6,g0)); a(valu("v_lshl_add_u32",x,cS,4,x)); a(valu("v_lshl_add_u32",x,g1,3,x)); a(valu("v_lshl_add_u32",x,rp,1,x))
    a(salu("s_lshl_b32",sT1,sHH,8)); a(salu("s_lshl_b32",sT2,sPM,7)); a(salu("s_add_u32",sT1,sT1,sT2)); a(salu("s_add_u32",sT1,sT1,H12))
    a(valu("v_add_u32",H12W,sT1,x))
    a(valu("v_cmp_eq_u32","vcc",rp,g0))
    a(valu("v_lshlrev_b32",x,6,g1)); a(valu("v_lshl_add_u32",x,cS,4,x)); a(valu("v_mov_b32",z,ZB))
    a(salu("s_lshl_b32",sT1,sPM,8)); a(salu("s_add_u32",sT1,sT1,H12)); a(valu("v_add_u32",y,sT1,x)); a(valu("v_cndmask_b32",H12R,z,y,"vcc"))
    a(valu("v_lshlrev_b32",y,9,g1)); a(valu("v_lshl_add_u32",y,cS,4,y)); a(valu("v_add_u32",z,64,y)); a(valu("v_cndmask_b32",y,z,y,"vcc"))
    a(salu("s_mul_i32",sT1,sPM,6144)); a(salu("s_add_u32",sT1,sT1,XEX(6))); a(valu("v_add_u32",y,sT1,y)); park(a,"x12a",y)
    a(salu("s_mov_b32",sT2,-7)); a(salu("s_movk_i32",sT3,400)); a(salu("s_lshl_b32",sT1,sHN,6))
    ch,oh,ow=t[17],t[18],t[19]
    a(valu("v_lshl_add_u32",ch,g1,4,sT1)); a(valu("v_lshrrev_b32",oh,1,rp)); a(valu("v_and_b32",ow,1,rp))
    fix=t[21]
    a(valu("v_mul_u32_u24",fix,RPS-2560,oh)); a(valu("v_lshl_add_u32",fix,ow,7,fix)); a(valu("v_add_u32",fix,RPS+2560+384,fix))
    a(salu("s_lshl_b32",sT0,sPM,3)); a(salu("s_movk_i32",sCNT,RPS))
    for s in range(3):
        P,Rr,Cc,x,y=t[9],t[15],t[16],t[22],t[23]
        a(valu("v_lshl_add_u32",P,g0,2,cS)); a(valu("v_add_u32",P,sT0,P))
        if s: a(valu("v_add_u32",P,16*s,P))
        a(valu("v_mul_u32_u24",Rr,0x2493,P)); a(valu("v_lshrrev_b32",Rr,16,Rr)); a(valu("v_mad_i32_i24",Cc,Rr,sT2,P))
        a(valu("v_mad_u32_u24",x,Rr,sCNT,fix)); a(valu("v_lshl_add_u32",x,Cc,8,x))
        a(valu("v_add3_u32",y,Cc,ow,1)); a(valu("v_and_b32",y,7,y)); a(valu("v_lshlrev_b32",y,4,y)); a(valu("v_xor_b32",y,y,ch))
        a(valu("v_add_u32",RLA(s,0),x,y)); a(valu("v_xad_u32",RLA(s,1),y,32,x))
        a(valu("v_lshl_add_u32",Rr,Rr,1,oh)); a(valu("v_lshl_add_u32",Cc,Cc,1,ow))
        a(valu("v_mad_u32_u24",P,Rr,14,Cc)); a(valu("v_mad_u32_u24",P,P,sT3,ch)); a(valu("v_add_u32",OSW(s),OS,P))
    for k in range(3):
        x=t[9]
        a(valu("v_add_u32",x,56*k,L)); a(valu("v_mul_u32_u24",t[15],0xaab,x)); a(valu("v_lshrrev_b32",t[15],16,t[15]))
        a(valu("v_add_u32",x,x,t[15])); a(valu("v_lshlrev_b32",x,4,x)); a(valu("v_add_u32",OSR(k),OS,x))
    a(valu("v_cmp_gt_u32","vcc",56,L)); a(valu("v_mov_b32",t[9],0x80000000)); a(nop(0)); a(valu("v_cndmask_b32",L16S,t[9],l16,"vcc"))
    lc,x,y=t[9],t[15],t[16]
    a(salu("s_lshl_b32",sT0,sPM,1)); a(valu("v_mov_b32",lc,sT0)); a(valu("v_cmp_eq_u32","vcc",0,oh)); a(nop(1)); a(valu("v_cndmask_b32",lc,1,lc,"vcc"))
    a(valu("v_lshl_add_u32",x,ow,6,gc)); a(valu("v_lshl_add_u32",x,lc,12,x)); a(salu("s_lshl_b32",sT0,sHN,11)); a(valu("v_add_u32",A12R,sT0,x))
    a(valu("v_lshl_add_u32",x,g0,1,g1)); a(valu("v_lshlrev_b32",x,3,x)); a(valu("v_lshl_add_u32",x,ow,5,x)); a(valu("v_lshl_add_u32",x,lc,7,x)); a(valu("v_add_u32",x,sT1,x))
    a(valu("v_lshrrev_b32",y,1,cS)); a(valu("v_and_b32",lc,1,cS))
    a(valu("v_mul_u32_u24",t[17],ROWB,y)); a(valu("v_mul_u32_u24",t[18],384,lc)); a(valu("v_add3_u32",R12V,t[17],t[18],x)); a(valu("v_add_u32",R12V,12*ROWB+12*384,R12V))
    a(valu("v_mad_u32_u24",y,y,14,lc)); a(valu("v_mad_u32_u24",y,y,sT3,x)); a(valu("v_add_u32",O12W,OS+(12*14+12)*400,y))
    key,val,x=t[9],t[15],t[16]
    a(valu("v_bfe_u32",key,L,3,2)); a(valu("v_lshlrev_b32",key,1,key)); a(valu("v_bfe_u32",x,L,1,1)); a(valu("v_add_u32",key,key,x))
    a(valu("v_and_b32",x,1,rp)); a(valu("v_xor_b32",x,x,g1)); a(valu("v_lshl_add_u32",key,x,4,key))
    a(valu("v_and_b32",x,1,L)); a(valu("v_lshlrev_b32",x,4,x)); a(valu("v_mov_b32",val,0x3f80)); a(valu("v_lshlrev_b32",val,x,val))
    for d in range(8):
        a(valu("v_cmp_eq_u32","vcc",d,key)); a(nop(1)); a(valu("v_cndmask_b32",x,0,val,"vcc")); a(valu("v_accvgpr_write_b32",A(240+d),x))
    x,y,n,C,e5,sp=t[9],t[15],t[16],t[17],t[18],t[19]
    a(valu("v_lshrrev_b32",x,2,L)); a(valu("v_lshlrev_b32",x,6,x))
    a(salu("s_lshl_b32",sT0,sW,10)); a(salu("s_add_u32",sT1,sT0,STB)); a(valu("v_add_u32",y,sT1,x)); park(a,"stw",y)
    a(salu("s_xor_b32",sT0,sT0,1024)); a(salu("s_add_u32",sT1,sT0,STB)); a(valu("v_add_u32",y,sT1,x)); park(a,"str",y)
    a(salu("s_lshl_b32",sT0,sPM,2)); a(valu("v_add_u32",C,sT0,rp))
    a(salu("s_lshl_b32",sT1,sHN,11)); a(valu("v_lshl_add_u32",e5,cS,9,sT1))
    a(valu("v_lshl_add_u32",sp,g,4,e5)); a(valu("v_add_u32",sp,XEX(6),sp))
    a(valu("v_cmp_gt_u32",MB2,7,C)); a(valu("v_mov_b32",x,sNA)); a(valu("v_add_u32",t[20],64,sp)); a(valu("v_cndmask_b32",NAV,0,x,MB2))
    a(valu("v_lshlrev_b32",t[21],2,g)); a(valu("v_lshlrev_b32",t[22],1,cS)); a(valu("v_xor_b32",t[21],t[21],t[22]))
    a(salu("s_movk_i32",sT2,12288)); a(salu("s_movk_i32",sT3,10240))
    for R_ in range(7):
        P=t[23]
        a(valu("v_add_u32",P,7*R_,C))
        a(valu("v_and_b32",n,3,P)); a(valu("v_xor_b32",n,n,t[21])); a(valu("v_lshl_add_u32",n,n,4,e5))
        a(valu("v_bfe_u32",x,P,2,1)); a(valu("v_lshl_add_u32",n,x,8,n))
        a(valu("v_lshrrev_b32",x,3,P)); a(valu("v_mad_u32_u24",n,x,sT2,n))
        if R_>=3:
            a(valu("v_lshrrev_b32",x,5,P)); a(valu("v_mad_u32_u24",n,x,sT3,n))
        if R_==6:
            a(valu("v_cmp_eq_u32","vcc",48,P)); a(nop(1)); a(valu("v_cndmask_b32",n,n,sp,"vcc"))
        a(valu("v_cndmask_b32",n,t[20],n,MB2)); park(a,f"xw{R_}",n)
    a(valu("v_lshlrev_b32",n,1,g1)); a(valu("v_xor_b32",n,n,L)); a(valu("v_lshlrev_b32",n,4,n))
    a(salu("s_mul_i32",sT0,sPM,18432)); a(salu("s_mul_i32",sT1,sPM,6144)); a(salu("s_add_u32",sT1,sT1,6144))
    a(valu("v_add_u32",x,sT0,n)); park(a,"xa00",x); a(valu("v_xor_b32",x,64,x)); park(a,"xa10",x)
    a(valu("v_add_u32",x,sT1,n)); park(a,"xa01",x); a(valu("v_xor_b32",x,64,x)); park(a,"xa11",x)
    a(salu("s_mov_b32","vcc_lo",0xaaaaaaaa)); a(salu("s_mov_b32","vcc_hi",0xaaaaaaaa))
    return c
def sU(u): return 16*u if u<=4 else UREG[u]

def w1_dma(slot,flat=False):
    out=[]
    for i in range(6):
        m=salu("s_add_u32","m0",sM1,W1OFF[slot]+4096*(i//4)) if i%4==0 else None
        s=salu("s_add_u32",sT0,sW1O,(i>>1)*24576+(i&1)*3072-1024*(i%4))
        d=dma(DW1,SW1,sT0,off=1024*(i%4))
        out.append((m,s,d))
    adv=salu("s_add_u32",sW1O,sW1O,128)
    if flat: return [x for tr in out for x in tr if x is not None]+[adv]
    return out,adv
def w2_dma(slot):
    out=[]
    for i in range(6):
        m=salu("s_add_u32","m0",sM2,W2S[slot]+4096*(i//4)) if i%4==0 else None
        s=salu("s_add_u32",sW2O,sW2O,4096) if i==4 else None
        d=dma(DW2(i%3),SW2,sW2O,off=1024*(i%4))
        out.append((m,s,d))
    adv=salu("s_add_u32",sW2O,sW2O,24576-4096)
    return out,adv

TR="ds_read_b64_tr_b16"
def conv_reads(ch,i):
    n=8*ch+i; slot=(ch&1)*5120
    Ar=[dsr(TR,AR(n).sub(2*th,2),CA(th),8*(16*ch+i)) for th in range(4)]
    Br=[dsr(TR,BETA(n).sub(2*r,2),CB(i>>1,r//5),(r%5)*RPS+slot+8*(i&1)) for r in range(10)]
    return Ar,Br
def conv_chunk(ch,state):
    c=[]
    A0,B0=conv_reads(ch,0)
    def sel(r):
        d=CD(r); R_=r%7; k=r//7
        return [valu("v_cndmask_b32",d.sub(0),d.sub(0),d.sub(1),"vcc"),valu("v_cndmask_b32",d.sub(2),d.sub(2),d.sub(3),"vcc"),
                valu("v_cndmask_b32",RES(R_,k),d.sub(0),d.sub(2),MB1)]
    r0=56*ch
    for i in range(8):
        n=8*ch+i
        nx=[]
        if i<7:
            Ar,Br=conv_reads(ch,i+1); nx=Ar[:2]+Br[:2]+Ar[2:]+Br[2:]
        elif ch<2:
            nx=conv_reads(ch+1,0)[0]
        for R_ in range(7):
            r=r0+7*i+R_; d=CD(r)
            s_=sel(r-2) if r-2>=r0 else []
            c.append(mfma(16,d,AR(n).sub(0,4),BETA(n).sub(2*R_,4),0))
            if nx: c.append(nx.pop(0))
            c+=s_[:2]
            c.append(mfma(16,d,AR(n).sub(4,4),BETA(n).sub(2*R_+4,4),d))
            if nx: c.append(nx.pop(0))
            c+=s_[2:]
    tail=sel(r0+54)+sel(r0+55)
    return A0,B0,c,tail

def pk(op,d,*srcs,mod=""): return valu(op,d,*srcs,mod=mod)
def pair(R_,k): return V(RES(R_,k).n,2)
def SQ(R_): return (V(32+2*R_,2),V(76+2*R_,2) if R_<6 else V(46,2))
def stats_chunk(ch):
    c=[]
    for k in range(8*ch,8*ch+8,2):
        for R_ in range(7):
            S,Q=SQ(R_); x=pair(R_,k)
            if k==0: c.append(pk("v_pk_mul_f32",Q,x,x))
            else: c.append(pk("v_pk_fma_f32",Q,x,x,Q))
            if k==2: c.append(pk("v_pk_add_f32",S,pair(R_,0),x))
            elif k>2: c.append(pk("v_pk_add_f32",S,S,x))
    return c
def spread(c,extra,start,step):
    out=[]; m=0; extra=list(extra)
    for i in c:
        out.append(i)
        if i.kind=="mfma":
            if extra and m>=start and (m-start)%step==0: out+=extra.pop(0)
            m+=1
    for e in extra: out+=e
    return out
def xdma(ch):
    return [[salu("s_add_u32","m0",sM0X(k),5120*(ch&1)),nop(0),dma(XV(k),SX,sT2,aux=XAUX)] for k in range(13)]
def resreads(ch):
    return [[dsr("ds_read_b128",resfrag(3*s+ch,q),RLA(s,q),5120*(ch&1))] for s in range(3) for q in range(2)]
def conv_all():
    A0,B0,c0,t0=conv_chunk(0,None); A1,B1,c1,t1=conv_chunk(1,None); A2,B2,c2,t2=conv_chunk(2,None)
    NE=int(os.environ.get("NEARLY","13"))
    x1=xdma(1)
    w10=w1_dma(0)
    w1l=[[x for x in tr if x is not None] for tr in w10[0]]; w1l[-1].append(w10[1])
    c=[salu("s_movk_i32",sT2,128)]+[i for g in x1[:NE] for i in g]
    c+=[wait(vm=NE),barrier()]+A0[:2]+B0[:2]+A0[2:]+B0[2:]
    c0=spread(c0,x1[NE:]+w1l,2,4); c0=spread(c0,resreads(0),103,1)
    c+=c0+t0
    c+=[wait(vm=6,lgkm=0),barrier()]
    c.append(salu("s_movk_i32",sT2,256))
    c1=spread(c1,resreads(1),103,1)
    c+=B1+[i for g in xdma(2) for i in g]+c1+t1
    c+=stats_chunk(0)
    c+=[wait(vm=0,lgkm=0),barrier()]
    c2=spread(c2,resreads(2),99,1)
    c+=B2+stats_chunk(1)+c2+t2
    return c

def layernorm():
    c=[]; a=c.append
    def unpark(name,reg): a(valu("v_accvgpr_read_b32",reg,PARK[name]))
    T=range(7)
    S=[SQ(i)[0] for i in T]; Q=[SQ(i)[1] for i in T]
    stw,str_,l16=V(72),V(73),V(74)
    unpark("stw",stw); unpark("str",str_)
    c+=stats_chunk(2)
    for i in T: a(valu("v_add_f32",S[i].sub(0),S[i].sub(0),S[i].sub(1))); a(valu("v_add_f32",S[i].sub(1),Q[i].sub(0),Q[i].sub(1)))
    for qp in ("[1,0,3,2]","[2,3,0,1]"):
        for i in T:
            for h in (0,1): a(valu("v_add_f32_dpp",S[i].sub(h),S[i].sub(h),S[i].sub(h),mod=f"quad_perm:{qp} row_mask:0xf bank_mask:0xf"))
    for k in range(3): a(dsw("ds_write_b128",stw,V(32+4*k,4),16*k))
    a(dsw("ds_write_b64",stw,S[6],48))
    a(wait(lgkm=0)); a(barrier())
    PS=V(48,16)
    for k in range(4): a(dsr("ds_read_b128",PS.sub(4*k,4),str_,16*k))
    for k in range(12): c+=w1_reads(k,0)
    c+=w1_dma(1,flat=True)
    Z=V(76,4)
    a(valu("v_mov_b64",Z.sub(0,2),0)); a(valu("v_mov_b64",Z.sub(2,2),0)); a(valu("v_lshlrev_b32",l16,4,L))
    a(dsw("ds_write_b128",l16,Z,ZB))
    for i in T: unpark(f"xw{i}",V(64+i))
    for i in T: a(pk("v_pk_add_f32",S[i],S[i],PS.sub(2*i,2)))
    a(salu("s_mov_b32",sT1,f32(1/192)))
    for i in T: a(valu("v_mul_f32",S[i].sub(0),sT1,S[i].sub(0)))
    for i in T: a(valu("v_mul_f32",Q[i].sub(0),S[i].sub(0),S[i].sub(0)))
    for i in T:
        x=valu("v_fma_f32",Q[i].sub(0),S[i].sub(1),sT1,Q[i].sub(0)); x.txt=x.txt.replace(f", {Q[i].sub(0)}",f", -{Q[i].sub(0)}"); a(x)
    for i in T: a(valu("v_max_f32",Q[i].sub(0),0,Q[i].sub(0)))
    for i in T: a(valu("v_add_f32",Q[i].sub(0),f32(1e-5),Q[i].sub(0)))
    for i in T: a(valu("v_rsq_f32",Q[i].sub(0),Q[i].sub(0)))
    for i in T: a(valu("v_mul_f32",Q[i].sub(0),NAV,Q[i].sub(0)))
    for i in T:
        x=valu("v_mul_f32_e64",Q[i].sub(1),S[i].sub(0),Q[i].sub(0)); x.txt=x.txt.replace(f", {S[i].sub(0)}",f", -{S[i].sub(0)}"); a(x)
    M="op_sel:[0,0,1] op_sel_hi:[1,0,1]"
    for i in T:
        for ch in range(3):
            for k in range(8*ch,8*ch+8,2): a(pk("v_pk_fma_f32",pair(i,k),pair(i,k),Q[i],Q[i],mod=M))
            for j in range(4): a(valu("v_cvt_pk_bf16_f32",RES(i,8*ch+j),RES(i,8*ch+2*j),RES(i,8*ch+2*j+1)))
            a(dsw("ds_write_b128",V(64+i),V(RES(i,8*ch).n,4),4096*ch))
    for p_ in range(2):
        for h in range(2): unpark(f"xa{p_}{h}",XA(p_,h))
    unpark("x12a",X12A)
    a(wait(lgkm=0)); a(barrier())
    return c
def XA(p,h): return V(108+2*p+h)
X12A=V(96)
def xread(s,k): return dsr("ds_read_b128",XF(s,k),XA(k&1,int(k>=6)),XEX(2*s)+(k%6)*1024)
def resfrag(tl,q):
    f=2*tl+q
    if f<10: return XF(2,f)
    f-=10
    return A(216+4*f,4) if f<6 else A(248+4*(f-6),4)

def w1_reads(k,slot):
    return [dsr(TR,W1F(k).sub(2*rd,2),W1LO if k<6 else W1HI,(32*(k>>1)+16*rd+8*(k&1))*128+W1OFF[slot]) for rd in range(2)]
def w2_reads(dst,k,lct,slot):
    return [dsr(TR,dst.sub(2*rd,2),W2A(k>>1),(16*k+8*rd)*384+128*lct+W2S[slot]-(12288 if k>=2 else 0)) for rd in range(2)]

def gelu_group(src,gi,stg,extra=None):
    ts=[GT(4*(gi%2)+j) for j in range(4)]; xs=[src.sub(j) for j in range(4)]
    if extra: xs=xs+[extra[0]]; ts=ts+[extra[1]]
    n=len(xs); f=[]
    for j in range(n): f.append(valu("v_fmaak_f32",ts[j],xs[j],xs[j],f32(CC)))
    for j in range(n): f.append(valu("v_mul_f32",ts[j],ts[j],xs[j]))
    for j in range(n): f.append(valu("v_exp_f32",ts[j],ts[j]))
    for j in range(n): f.append(valu("v_fma_f32",ts[j],ts[j],sNA,sNA))
    for j in range(n): f.append(valu("v_rcp_f32",ts[j],ts[j]))
    for j in range(n): f.append(valu("v_mul_f32",ts[j],ts[j],xs[j]))
    f.append(valu("v_cvt_pk_bf16_f32",stg.sub(0),ts[0],ts[1])); f.append(valu("v_cvt_pk_bf16_f32",stg.sub(1),ts[2],ts[3]))
    if extra: f.append(valu("v_cvt_pk_bf16_f32",extra[1],extra[1],extra[1]))
    return f

class Op:
    def __init__(s,inst,lo=0,hi=10**6,then=None,pre=None): s.i=inst; s.lo=lo; s.hi=hi; s.then=then; s.pre=pre
def schedule(M,vs,mem,sal,memcap=1,thens=None):
    n=len(M); out=[]; vs=list(vs); mem=list(mem); rel=[]; thens=dict(thens or {})
    def rem(): return sum(o.i.cost+(o.then.i.cost if o.then else 0) for o in vs)+sum(o.i.cost for o in mem+rel+list(thens.values()))
    quiet=-1
    for g in range(n):
        wsum=sum(m.passes for m in M[g:])
        budget=(rem()+8*(n-g))*M[g].passes/wsum
        out.append(M[g]); acc=8
        for k,s in enumerate(sal.get(g,[])):
            out.append(s); acc+=4 if k else 0
        if g in thens: rel.append(thens.pop(g))
        k=0
        for o in [o for o in rel if o.lo<=g][:1]:
            out.append(o.i); acc+=o.i.cost; rel.remove(o); k+=memcap; quiet=g+QUIET
        av=sorted([o for o in mem if o.lo<=g],key=lambda o:o.hi)
        for idx,o in enumerate(av):
            urgent=any(sum(1 for x in mem if x.hi<=y.hi)>(y.hi-g-1)*memcap for y in av[idx:idx+6] if y in mem)
            if o.hi>g+1 and not urgent and (k>=memcap or g<=quiet): break
            if k>=max(2,memcap) and o.hi>g+1: break
            out.append(o.i); acc+=o.i.cost; mem.remove(o); k+=1
        force=max([i for i,o in enumerate(vs) if o.hi<=g+1],default=-1)
        cnt=0
        while vs and vs[0].lo<=g and (cnt<=force or acc+vs[0].i.cost/2<=budget):
            o=vs.pop(0); out.append(o.i); acc+=o.i.cost; cnt+=1
            if o.then: o.then.lo=max(o.then.lo,g+1); rel.append(o.then)
        assert cnt>force,("valu deadline",g)
    assert not mem and not thens,(len(mem),)
    for o in vs:
        out.append(o.i)
        if o.then: rel.append(o.then)
    for o in rel: out.append(o.i)
    return out

LEAD=int(os.environ.get("LEAD","4")); QUIET=int(os.environ.get("QUIET","1"))
def interval(j):
    p=j%2; first=(j==0); last=(j==11)
    M=[]; pos={}; gi={}; w1use={}; w2last={}; thens={}
    def g1(s,buf,t12=False):
        pos[f"b{s}"]=len(M)
        for k in range(12):
            w1use[(s,k)]=len(M); M.append(mfma(32,D(buf),W1F(k),XF(s,k),D(buf) if k else 0))
            if t12 and k%2==1:
                M.append(mfma(16,D12,W1F(k//2),X12F(k//2),D12 if k>1 else 0))
        pos[f"e{s}"]=len(M)
        if t12: thens[len(M)+2]=Op(dsw("ds_write_b128",P12W,D12,P12+4096*(1-p)))
    def g2(a_,b_):
        for i in range(a_,b_):
            gi[i]=len(M)
            if first:
                tl,q=i//2,i%2; M.append(mfma(32,ACC(tl//3,tl%3),IDF(q),resfrag(tl,q),ACC(tl//3,tl%3) if q else 0))
            else:
                k,l,s=i//9,(i//3)%3,i%3
                M.append(mfma(32,ACC(s,l),W2F(3*k+l),HF(3*k+s),ACC(s,l)))
                if k<2 and s==1: gi[("t",3*k+l)]=len(M); M.append(mfma(16,ACC12(l),W2F(3*k+l),H12F(k),ACC12(l)))
    cuts=[10,14,18] if first else [12,24,36]
    g1(1,1-p); g2(0,cuts[0]); g1(2,p); g2(cuts[0],cuts[1])
    if not last: g1(0,1-p,True)
    g2(cuts[1],cuts[2])
    n=len(M)
    mem=[]; sal={}
    if not first:
        for ph in range(12):
            lo=0 if ph<4 else gi[3*(ph-4)+2]
            for x in w2_reads(W2F(ph),ph//3,ph%3,1-p): mem.append(Op(x,lo,gi[3*ph]-LEAD+1))
        for k in range(4):
            for s in range(3):
                lo=0 if k<2 else gi[9*(k-2)+6+s]
                mem.append(Op(dsr("ds_read_b128",HF(3*k+s),HR,HOFF[1-p]+(4*s+k)*1024),lo,gi[9*k+s]-LEAD+1))
        for k in range(2): mem.append(Op(dsr("ds_read_b128",H12F(k),H12R,512*(1-p)+128*k),0,gi[("t",3*k)]-LEAD+1))
    else:
        for k in range(XPRE,12): mem.append(Op(xread(1,k),0,max(1,k-LEAD+1)))
        for k in range(12): mem.append(Op(xread(2,k),gi[k] if k<10 else 0,pos["b2"]+k-LEAD+1))
    mem.append(Op(dsr("ds_read2st64_b32",T12T.sub(0,2),P12R,mod=f"offset0:{16*p} offset1:{16*p+4}"),0,3))
    if not last:
        for k in range(12):
            for x in w1_reads(k,1-p): mem.append(Op(x,w1use[(2,k)],w1use[(0,k)]-LEAD+1))
    lists=[]
    if not last: lists.append(w1_dma(p))
    lists.append(w2_dma(p))
    step=int(os.environ.get("DSTEP","5"))
    if first: step=3
    g=1
    for tr,adv in lists:
        for m,s,d in tr:
            if m is not None: sal.setdefault(g-1,[]).append(m)
            if s is not None: sal.setdefault(g,[]).append(s)
            mem.append(Op(d,g,g+1)); g+=step
        sal.setdefault(g-step+1,[]).append(adv)
    vs=[]; gc=[1]
    def grp(s,buf,g,lo,hi,hb,extra=None):
        fr=g>>1; stg=STG(fr)
        ops=gelu_group(D(buf).sub(4*g,4),gc[0],stg.sub(2*(g&1),2),extra); gc[0]+=1
        o=[Op(x,lo,hi) for x in ops]
        k=-2 if extra else -1
        if g&1: o[k].then=Op(dsw("ds_write_b128",HW,stg,HOFF[hb]+(4*s+fr)*1024))
        if extra: o[-1].then=Op(dsw("ds_write_b16",H12W,extra[1],512*p))
        return o
    if first:
        for l in range(3):
            for h in range(2): vs.append(Op(valu("v_mov_b64",ACC12(l).sub(2*h,2),0)))
    vs+=grp(0,p,1,0,pos["b2"],p)
    vs+=[Op(valu("v_add_f32",T12T.sub(0),T12T.sub(0),T12T.sub(1)),4)]
    vs+=grp(0,p,2,0,pos["b2"],p,extra=(T12T.sub(0),T12T.sub(1)))
    vs+=grp(0,p,3,0,pos["b2"],p)
    for g_ in range(4): vs+=grp(1,1-p,g_,pos["e1"]+2,pos.get("b0",10**6),p)
    for g_ in range(4): vs+=grp(2,p,g_,pos["e2"]+2,(n-3) if not last else 10**6,p)
    if not last: vs+=grp(0,1-p,0,pos["e0"]+2,10**6,1-p)
    KO=os.environ.get("KO","").split(",")
    if "dma" in KO: mem=[o for o in mem if o.i.kind!="dma"]
    if "dsw" in KO:
        for o in vs: o.then=None
    if "dsr" in KO: mem=[o for o in mem if o.i.kind!="dsr"]
    c=schedule(M,vs,mem,sal,thens=thens)
    return c

XPRE=6
def pre_interval():
    M=[]
    for k in range(12): M.append(mfma(32,D(0),W1F(k),XF(0,k),D(0) if k else 0))
    for k in range(6): M.append(mfma(16,D12,W1F(k),X12F(k),D12 if k else 0))
    c=[xread(0,k) for k in range(6)]
    mem=[Op(xread(0,k),0,k-3) for k in range(6,12)]
    for k in range(6): mem.append(Op(dsr("ds_read_b128",X12F(k),X12A,1024*k),0,9))
    for k in range(XPRE): mem.append(Op(xread(1,k),0,12))
    gl=[Op(x,16) for x in gelu_group(D(0).sub(0,4),0,STG(0).sub(0,2))]
    gl[-8].then=Op(dsw("ds_write_b128",P12W,D12,P12))
    c+=schedule(M,gl,mem,{},memcap=2)
    c+=[wait(vm=0,lgkm=0),barrier()]
    return c

def final():
    c=[]; a=c.append
    p=1
    def WF(k,l): return W1F(3*k+l)
    M=[]; end={}; thens={}
    A12W=V(110)
    for s in range(3):
        for l in range(3):
            for k in range(4): M.append(mfma(32,ACC(s,l),WF(k,l),XF(0,4*s+k),ACC(s,l)))
            end[(s,l)]=len(M)
            if s==0:
                for k in range(2): M.append(mfma(16,ACC12(l),WF(k,l),H12F(k),ACC12(l)))
                thens[len(M)+3]=Op(dsw("ds_write_b128",A12W,ACC12(l),4096*l))
    def hr(s,k): return dsr("ds_read_b128",XF(0,4*s+k),HR,HOFF[p]+(4*s+k)*1024)
    R12=V(108,2)
    for k in range(4): c+=w2_reads(WF(k,0),k,0,p)+[hr(0,k)]
    a(bload(2,R12,R12V,SX,sTB))
    mem=[]
    for k in range(2): mem.append(Op(dsr("ds_read_b128",H12F(k),H12R,512*p+128*k),0,1))
    for l in (1,2):
        for k in range(4):
            for x in w2_reads(WF(k,l),k,l,p): mem.append(Op(x,0,6*l+k-3))
    for s in (1,2):
        for k in range(4): mem.append(Op(hr(s,k),0,14))
    vs=[Op(valu("v_lshlrev_b32",A12W,4,L)),Op(valu("v_add_u32",A12W,sT0,A12W))]
    sal={0:[salu("s_lshl_b32",sT0,sHN,1),salu("s_add_u32",sT0,sT0,sPM),salu("s_lshl_b32",sT0,sT0,10)]}
    def epi(s,l,lo):
        o=[]
        for q in range(2):
            r=ACC(s,l)
            for j in range(4): o.append(Op(valu("v_cvt_pk_bf16_f32",r.sub(8*q+j),r.sub(8*q+2*j),r.sub(8*q+2*j+1)),lo))
            o[-1].then=Op(dsw("ds_write_b128",OSW(s),r.sub(8*q,4),128*l+32*q))
        return o
    SB=[V(48+4*i,4) for i in range(8)]
    sRow,sRow2="s70","s71"; RA=[V(32+i) for i in range(3)]
    def row_setup(r0):
        return [salu("s_add_u32",sT0,sW,r0),salu("s_mul_i32",sRow,sT0,ROWB),salu("s_add_u32",sRow,sRow,sTB),salu("s_add_u32",sRow2,sRow,2688),
                salu("s_mul_i32",sT0,sT0,5600)]+[valu("v_add_u32",RA[k],sT0,OSR(k)) for k in range(3)]
    def row_ops(b0):
        rd=[dsr("ds_read_b128",SB[(b0+k)%8],RA[k%3],2800*(k//3)) for k in range(6)]
        st=[bstore(4,SB[(b0+k)%8],L16S,SOUT,sRow if k<3 else sRow2,off=896*(k%3),aux=STAUX) for k in range(6)]
        return rd,st
    C1,C2=24,36
    for l in range(3): vs+=epi(0,l,end[(0,l)]+3)
    c+=schedule(M[:C1],vs,mem,sal,memcap=3,thens=thens)
    c+=row_setup(0)
    c+=[wait(lgkm=0),barrier()]
    rd,st=row_ops(0)
    PT=V(84,8)
    mem=[Op(x,0,2) for x in rd]+[Op(x,3+i,4+i) for i,x in enumerate(st)]
    mem+=[Op(dsr("ds_read_b128",PT.sub(4*i,4),A12R,1024*i),0,3) for i in range(2)]
    vs=[]
    t12=[]
    for j in range(4): t12.append(valu("v_add_f32",PT.sub(j),PT.sub(j),PT.sub(4+j)))
    for j in range(2):
        t12.append(valu("v_lshlrev_b32",PT.sub(4+2*j),16,R12.sub(j))); t12.append(valu("v_and_b32",PT.sub(5+2*j),0xffff0000,R12.sub(j)))
    for j in range(4): t12.append(valu("v_add_f32",PT.sub(j),PT.sub(j),PT.sub(4+j)))
    t12+=[valu("v_cvt_pk_bf16_f32",PT.sub(0),PT.sub(0),PT.sub(1)),valu("v_cvt_pk_bf16_f32",PT.sub(1),PT.sub(2),PT.sub(3))]
    t12=[Op(x,5) for x in t12]; t12[-1].then=Op(dsw("ds_write_b64",O12W,PT.sub(0,2)))
    vs+=epi(1,0,max(0,end[(1,0)]+3-C1))+epi(1,1,end[(1,1)]+3-C1)+t12+epi(1,2,end[(1,2)]+3-C1)
    c+=schedule(M[C1:C2],vs,mem,{},memcap=3)
    c+=row_setup(4)
    c+=[wait(lgkm=0),barrier()]
    rd,st=row_ops(6)
    mem=[Op(x,0,2) for x in rd]+[Op(x,3+i//2,4+i//2) for i,x in enumerate(st)]
    vs=epi(2,0,end[(2,0)]+3-C2)+epi(2,1,end[(2,1)]+3-C2)
    c+=schedule(M[C2:],vs,mem,{},memcap=3)
    RB=[V(36+i) for i in range(3)]; sR3="s72"
    c+=row_setup(8)
    c+=[salu("s_mul_i32",sT0,sPM,ROWB),salu("s_mul_i32",sT1,sHN,2688),salu("s_add_u32",sR3,sT0,sT1),salu("s_add_u32",sR3,sR3,sTB),salu("s_add_u32",sR3,sR3,12*ROWB),
        salu("s_mul_i32",sT0,sW,2800),salu("s_add_u32",sT0,sT0,12*5600)]
    c+=[valu("v_add_u32",RB[k],sT0,OSR(k)) for k in range(3)]
    for o in epi(2,2,0):
        c.append(o.i)
        if o.then: c.append(o.then.i)
    c+=[wait(lgkm=0),barrier()]
    rd,st=row_ops(4)
    c+=rd
    SC=[V(84+4*i,4) for i in range(3)]
    c+=[dsr("ds_read_b128",SC[k],RB[k]) for k in range(3)]
    c+=st
    c+=[bstore(4,SC[k],L16S,SOUT,sR3,off=896*k,aux=STAUX) for k in range(3)]
    return c

NST=[0]
def stamp():
    k=NST[0]; NST[0]+=1
    if os.environ.get("RT"): return [raw("s_memrealtime s[92:93]"),wait(lgkm=0),raw(f"s_sub_u32 s{74+k}, s92, s95")]
    return [raw("s_memtime s[92:93]"),wait(lgkm=0),raw(f"s_sub_u32 s{74+k}, s92, s94")]
def add_stamps(code):
    out=[]
    for i in code:
        out.append(i)
        if i.kind=="barrier": out+=stamp()
    return out
def dump_stamps():
    c=[wait(vm=0)]+stamp()
    c+=[raw("s_memrealtime s[92:93]"),raw("s_load_dwordx2 s[4:5], s[0:1], 48"),wait(lgkm=0),raw(f"s_sub_u32 s{74+NST[0]}, s92, s95"),
        raw("s_mov_b32 s6, 0x1000000"),raw("s_mov_b32 s7, 0x20000"),raw("s_lshl_b32 s8, s2, 2"),raw(f"s_add_u32 s8, s8, {sW}"),raw("s_lshl_b32 s8, s8, 7"),raw("v_mov_b32 v1, s8")]
    for k in range(NST[0]+1):
        c+=[raw(f"v_mov_b32 v2, s{74+k}"),raw(f"buffer_store_dword v2, v1, s[4:7], 0 offen offset:{4*k}")]
    if DBG=="2":
        c+=[raw("s_load_dwordx2 s[4:5], s[0:1], 40"),wait(lgkm=0),raw("s_mov_b32 s6, 64"),raw("s_sub_u32 s8, s8, 51200"),raw("v_mov_b32 v1, s8")]
        for k in range(NST[0]+1):
            c+=[raw(f"v_mov_b32 v2, s{74+k}"),raw(f"buffer_store_dword v2, v1, s[4:7], 0 offen offset:{4*k}")]
    if os.environ.get("PADTO"):
        c+=[label("L_PAD"),raw("s_sleep 4"),raw("s_memrealtime s[92:93]"),wait(lgkm=0),raw("s_sub_u32 s92, s92, s95"),raw(f"s_cmp_lt_u32 s92, {os.environ['PADTO']}"),raw("s_cbranch_scc1 L_PAD")]
    print("nstamps",NST[0]+1,file=sys.stderr)
    return c
def endint(): return [wait(vm=0,lgkm=0),barrier()]

def build():
    segs=[]
    pro=prologue(); cv=conv_all(); ln=layernorm(); pre=pre_interval()
    i0=interval(0)+endint()
    head=fix_hazards(insert_waits(pro+cv+ln+pre+i0))
    i1=insert_waits(interval(1)+endint()); i2=insert_waits(interval(2)+[salu("s_sub_u32",sCNT,sCNT,1),salu("s_cmp_lg_u32",None,sCNT,0)]+endint())
    i11=insert_waits(interval(11)+endint()); fin=fix_hazards(insert_waits(final()))
    errs=check_hazards(head+i1+i2+i1+i2+i11+fin,"all")
    for e in errs[:40]: print(e,file=sys.stderr)
    for nm,s in (("pro",pro),("conv",insert_waits(cv)),("ln",ln),("pre",insert_waits(pre)),("i0",insert_waits(i0)),("i1",i1),("i2",i2),("i11",i11),("fin",fin)):
        print(f"{nm}: {len(s)} insts est {est_cycles(s)} cyc",file=sys.stderr)
    if DBG:
        st0=[raw("s_memtime s[92:93]"),raw("s_memrealtime s[90:91]"),wait(lgkm=0),raw("s_mov_b32 s94, s92"),raw("s_mov_b32 s95, s90")]
        head=head[:2]+st0+add_stamps(head[2:]); i11=stamp()+add_stamps(i11); fin=add_stamps(fin)+dump_stamps()
    code=head+[salu("s_mov_b32",sCNT,5),raw(".p2align 6","label",0),label("L_LOOP")]+i1+i2+[raw("s_cbranch_scc1 L_LOOP")]+i11+fin+[label("L_END")]
    return code,errs

HDR=open("standalone__convnext_block__vision.s.ref").read()
def emit(code,path):
    head=HDR[:HDR.index("; @launch")]
    s=head+"; @launch grid=(256,1,1) block=(256,1,1) lds=163840\n"
    s+='''.amdgcn_target "amdgcn-amd-amdhsa--gfx950"
.text
.globl standalone__convnext_block__vision_kernel
.p2align 8
.type standalone__convnext_block__vision_kernel,@function
standalone__convnext_block__vision_kernel:
'''
    for i in code: s+=("" if i.kind=="label" else "    ")+i.txt+"\n"
    s+='''s_endpgm
.section .rodata,"a"
.p2align 6
.amdhsa_kernel standalone__convnext_block__vision_kernel
  .amdhsa_next_free_vgpr 512
  .amdhsa_next_free_sgpr 96
  .amdhsa_accum_offset 256
  .amdhsa_group_segment_fixed_size 0
  .amdhsa_kernarg_size 56
  .amdhsa_user_sgpr_count 2
  .amdhsa_user_sgpr_kernarg_segment_ptr 1
  .amdhsa_system_sgpr_workgroup_id_x 1
.end_amdhsa_kernel
'''
    open(path,"w").write(s)
if __name__=="__main__":
    code,errs=build()
    out=sys.argv[1] if len(sys.argv)>1 else "standalone__convnext_block__vision.s"
    emit(code,out)
    print("hazard errors:",len(errs),file=sys.stderr)
```

```python
import struct, sys, math, os
from isa import *
def f32(x): return struct.unpack('<I', struct.pack('<f', x))[0]
K1=2*math.sqrt(2/math.pi)*math.log2(math.e); K3=K1*0.044715; AA=K3**(1/3); CC=K1/AA
ROWB=86016; XSZ=19267584
W2S=[0,24576]; P12=49152; H12=57344; HBASE=59392; HOFF=[24576,0]; W1BASE=114688; W1OFF=[24576,0]
OS=83968; RPS=10240; DWB=102400; ZB=58368; STB=97280; DUMMY=122880
def XEX(tau): return tau*12288+(10240 if tau>=4 else 0)
L=V(0)
W1LO,W1HI=V(1),V(2)
def W2A(hi): return V(3+hi)
def RLA(s,q): return V(22+s) if q==0 else V(5+s)
HW,HR,P12W,P12R,H12W,H12R=V(9),V(10),V(11),V(12),V(13),V(14)
DW1=V(15)
def DW2(k): return V(16+k)
def OSW(s): return V(19+s)
def OSR(k): return V(25+k)
L16S=V(28); A12R,R12V,O12W=V(29),V(30),V(31)
def GT(i): return V(32+i)
def STG(b): return V(40+4*b,4)
def D(b): return V(48+16*b,16)
D12=V(80,4)
def ACC12(l): return V(84+4*l,4)
T12T=V(96,4)
def H12F(k): return V(100+4*k,4)
def ACC(s,l): return V(112+16*(3*s+l),16)
def XF(s,k): return A(48*s+4*k,4)
def W1F(k): return A(144+4*k,4)
def X12F(k): return A(192+4*k,4)
def HF(i): return A(216+4*(i%6),4)
def W2F(i): return A(240+4*(i%4),4)
def IDF(q): return A(240+4*q,4)
def RES(R,k): return V(88+24*R+k)
def CD(i): return V(48+4*(i%4),4)
def CB(ui,hi): return V(64+2*ui+hi)
def CA(th): return V(72+th)
def XV(k): return V(32+k)
def BETA(i): return A(20*(i%2),20)
def AR(i): return A(64+8*(i%2),8)
NAV=V(8)
SX,SDW,SW1,SW2,SOUT="s[16:19]","s[20:23]","s[24:27]","s[28:31]","s[32:35]"
sW,sPM,sHN,sY0,sX0,sXB,sTB="s36","s37","s38","s39","s40","s41","s42"
sHH="s43"; MB1="s[44:45]"; MB2="s[70:71]"
def sM0X(k): return f"s{46+k}"
sCNT,sW1O,sW2O,sT0,sT1,sM1,sM2="s60","s61","s62","s63","s64","s65","s66"
sNA="s67"; sT2,sT3="s68","s69"
UREG={5:"s70",6:"s71",7:"s72"}
XAUX=os.environ.get("XAUX","")
STAUX=os.environ.get("STAUX","sc1")
DBG=os.environ.get("DBG","")
CP=int(os.environ.get("CP","1")); WP=int(os.environ.get("WP","1")); X2P=int(os.environ.get("X2P","0"))

PARK={}
def park(a,name,reg):
    PARK[name]=A(192+len(PARK)); a(valu("v_accvgpr_write_b32",PARK[name],reg))
def prologue():
    c=[]; a=c.append
    a(salu("s_cmp_ge_u32",None,"s2",256)); a(raw("s_cbranch_scc1 L_END"))
    for i,r in enumerate((16,20,24,28,32)):
        a(I(f"s_load_dwordx2 s[{r}:{r+1}], s[0:1], {8*i}","salu"))
    t=[V(200+i) for i in range(40)]
    a(valu("v_lshrrev_b32",t[0],6,L))
    a(valu("v_lshrrev_b32",t[1],3,L))
    a(valu("v_readfirstlane_b32",sW,t[0],kind="rfl"))
    a(valu("v_and_b32",t[2],7,L))
    a(valu("v_and_b32",L,63,L))
    a(salu("s_lshr_b32",sY0,"s2",6))
    a(salu("s_lshl_b32",sT0,"s2",1)); a(salu("s_and_b32",sT0,sT0,12)); a(salu("s_add_u32",sY0,sY0,sT0))
    a(salu("s_bfe_u32",sX0,"s2",0x30003))
    a(salu("s_lshl_b32",sT0,"s2",3)); a(salu("s_and_b32",sT0,sT0,8)); a(salu("s_add_u32",sX0,sX0,sT0))
    a(salu("s_mul_i32",sTB,sY0,14*ROWB)); a(salu("s_mul_i32",sX0,sX0,14))
    a(salu("s_mul_i32",sT0,sX0,384)); a(salu("s_add_u32",sTB,sTB,sT0))
    a(salu("s_sub_u32",sXB,sTB,3*ROWB+3*384))
    a(salu("s_sub_u32",sX0,sX0,3))
    a(salu("s_mov_b32","s18",XSZ)); a(salu("s_mov_b32","s19",0x20000))
    a(salu("s_mov_b32",sT2,-20)); a(salu("s_movk_i32",sT3,384))
    a(valu("v_mov_b32",t[3],0x80000000))
    first=True
    for k in range(5):
        p,row,col,x,y=t[4],t[5],t[6],t[7],t[8]
        if k: a(valu("v_add_u32",p,32*k,t[1]))
        else: p=t[1]
        a(valu("v_mul_u32_u24",row,0xccd,p)); a(valu("v_lshrrev_b32",row,16,row))
        a(valu("v_mad_i32_i24",col,row,sT2,p))
        a(valu("v_add_u32",x,sX0,col)); a(valu("v_cmp_gt_u32","vcc",224,x))
        a(valu("v_bfe_u32",x,col,1,3)); a(valu("v_xor_b32",x,x,t[2]))
        a(valu("v_mul_u32_u24",y,ROWB,row)); a(valu("v_mad_u32_u24",y,col,sT3,y))
        a(valu("v_lshl_add_u32",y,x,4,y)); a(valu("v_add_u32",y,sXB,y))
        a(valu("v_cndmask_b32",XV(k),t[3],y,"vcc"))
        a(valu("v_add_u32",XV(k+5),8*ROWB,XV(k)))
        a(salu("s_add_u32",sT0,sW,4*k)); a(salu("s_mul_i32",sT1,sT0,205)); a(salu("s_lshr_b32",sT1,sT1,10))
        a(salu("s_mul_i32",sT1,sT1,RPS-5120)); a(salu("s_lshl_b32",sT0,sT0,10)); a(salu("s_add_u32",sM0X(k),sT0,sT1))
        a(salu("s_add_u32",sM0X(k+5),sM0X(k),4*RPS))
        if k<2:
            a(valu("v_add_u32",XV(k+10),16*ROWB,XV(k))); a(salu("s_add_u32",sM0X(k+10),sM0X(k),8*RPS))
        if k==2:
            a(salu("s_add_u32",sT0,sM0X(2),8*RPS))
            a(salu("s_cmp_lt_u32",None,sW,2))
            a(salu("s_cselect_b32",sT1,16*ROWB,0x40000000))
            a(salu("s_cselect_b32",sM0X(12),sT0,DUMMY))
            a(valu("v_add_u32",XV(12),sT1,XV(2)))
        if first: a(wait(lgkm=0)); first=False
        for kk in (k,k+5,k+10):
            if kk<=12:
                a(salu("s_mov_b32","m0",sM0X(kk))); a(nop(0)); a(dma(XV(kk),SX,0,aux=XAUX))
    a(salu("s_mov_b32","s22",18816)); a(salu("s_mov_b32","s23",0x20000))
    a(salu("s_mul_i32",sT0,sW,320)); a(valu("v_add_u32",t[4],sT0,L))
    a(salu("s_mul_i32",sT1,sW,5120)); a(salu("s_add_u32",sT1,sT1,DWB))
    for i in range(5):
        U,tp=t[5],t[6]
        a(valu("v_add_u32",U,64*i,t[4])); a(valu("v_mul_u32_u24",tp,0xa3e,U)); a(valu("v_lshrrev_b32",tp,16,tp))
        a(valu("v_sub_u32",U,U,tp)); a(valu("v_lshlrev_b32",t[10+i],4,U))
        a(salu("s_add_u32","m0",sT1,1024*i)); a(nop(0)); a(dma(t[10+i],SDW,0))
    a(salu("s_mov_b32","s26",294912)); a(salu("s_mov_b32","s27",0x20000))
    a(salu("s_mov_b32","s30",294912)); a(salu("s_mov_b32","s31",0x20000))
    global NPF
    NPF=0
    if CP:
        a(raw("s_getpc_b64 s[4:5]")); a(label("L_PC")); a(raw("s_mov_b32 s6, L_END-L_PC")); a(raw("s_mov_b32 s7, 0x20000"))
        a(salu("s_lshl_b32",sT0,sW,13)); a(valu("v_lshl_add_u32",t[30],L,7,sT0))
        a(bload(1,t[31],t[30],"s[4:7]",0)); a(salu("s_mov_b32",sT0,32768)); a(bload(1,t[31],t[30],"s[4:7]",sT0)); NPF+=2
    if WP:
        a(salu("s_lshr_b32",sT0,"s2",3)); a(salu("s_mul_i32",sT0,sT0,72)); a(salu("s_mul_i32",sT1,sW,18)); a(salu("s_add_u32",sT0,sT0,sT1))
        a(valu("v_min_u32",t[32],17,L)); a(valu("v_add_u32",t[32],sT0,t[32])); a(valu("v_lshlrev_b32",t[32],7,t[32]))
        a(bload(1,t[31],t[32],SW1,0)); a(bload(1,t[31],t[32],SW2,0)); NPF+=2
    a(salu("s_mov_b32","s34",XSZ)); a(salu("s_mov_b32","s35",0x20000))
    a(salu("s_lshr_b32",sPM,sW,1)); a(salu("s_and_b32",sHN,sW,1)); a(salu("s_xor_b32",sHH,sPM,sHN))
    a(salu("s_mov_b32",sNA,f32(-AA)))
    a(salu("s_mov_b32","s44",0xcccccccc)); a(salu("s_mov_b32","s45",0xcccccccc))
    cS,rp,g,g0,g1,l16=t[0],t[1],t[2],t[3],t[4],t[5]
    a(valu("v_and_b32",cS,3,L)); a(valu("v_bfe_u32",rp,L,2,2)); a(valu("v_lshrrev_b32",g,4,L))
    a(valu("v_and_b32",g0,1,g)); a(valu("v_lshrrev_b32",g1,5,L)); a(valu("v_lshlrev_b32",l16,4,L))
    lp,j,b=t[6],t[9],t[15]
    a(valu("v_mul_u32_u24",lp,20,g1)); a(valu("v_add_u32",lp,lp,g0)); a(valu("v_lshlrev_b32",lp,7,lp))
    a(salu("s_lshl_b32",sT0,sPM,2)); a(salu("s_lshl_b32",sT1,sHN,6))
    a(valu("v_add_u32",j,sT0,cS)); a(valu("v_min_u32",j,6,j)); a(valu("v_add_u32",j,j,rp))
    a(valu("v_lshl_add_u32",b,j,8,lp)); a(valu("v_and_b32",j,7,j)); a(valu("v_lshl_add_u32",b,j,4,b)); a(valu("v_xor_b32",CB(0,0),sT1,b))
    for ui in range(1,4): a(valu("v_xor_b32",CB(ui,0),16*ui,CB(0,0)))
    for ui in range(4): a(valu("v_add_u32",CB(ui,1),5*RPS,CB(ui,0)))
    oh,ow,jj,i0,tp=t[7],t[8],t[9],t[15],t[16]
    a(valu("v_lshrrev_b32",oh,1,cS)); a(valu("v_and_b32",ow,1,cS))
    a(valu("v_lshl_add_u32",jj,rp,1,g0)); a(valu("v_sub_u32",jj,jj,ow)); a(valu("v_sub_u32",i0,g1,oh))
    a(salu("s_movk_i32",sT3,400)); a(salu("s_add_u32",sT0,sT1,DWB)); a(valu("v_mov_b32",t[18],sT0)); a(salu("s_add_u32",sT0,sT0,19600))
    for th in range(4):
        ii,z=t[17],t[19]
        a(valu("v_add_u32",ii,2*th,i0)); a(valu("v_mad_i32_i24",tp,ii,7,jj))
        a(valu("v_max_u32",ii,ii,jj)); a(valu("v_cmp_gt_u32","vcc",7,ii))
        a(valu("v_mad_u32_u24",tp,tp,sT3,t[18]))
        a(valu("v_sub_u32",z,22-2*th,g1)); a(valu("v_and_b32",z,15,z)); a(valu("v_lshl_add_u32",z,z,4,sT0))
        a(valu("v_cndmask_b32",CA(th),z,tp,"vcc"))
    lam,up,x,y=t[7],t[8],t[9],t[15]
    a(valu("v_lshrrev_b32",lam,3,L)); a(valu("v_and_b32",up,7,L))
    a(valu("v_and_b32",x,3,lam)); a(valu("v_lshlrev_b32",x,2,x)); a(valu("v_add_u32",x,x,g1))
    a(valu("v_mul_u32_u24",x,1536,x))
    a(valu("v_lshlrev_b32",y,2,g0)); a(valu("v_xor_b32",y,y,up)); a(valu("v_lshl_add_u32",DW1,y,4,x))
    for k in range(3):
        a(valu("v_add_u32",x,64*k,L)); a(valu("v_mul_u32_u24",x,0xaab,x)); a(valu("v_bfe_u32",x,x,17,1))
        a(valu("v_lshlrev_b32",x,6,x)); a(valu("v_xor_b32",DW2(k),x,l16))
    a(salu("s_mul_i32",sW1O,sW,73728)); a(salu("s_mul_i32",sW2O,sW,6144))
    a(salu("s_add_u32",sM1,sW2O,W1BASE)); a(salu("s_mov_b32",sM2,sW2O))
    hb,pc,x,y,z=t[7],t[8],t[9],t[15],t[16]
    a(valu("v_lshrrev_b32",hb,1,rp))
    a(valu("v_lshl_add_u32",x,g1,2,rp))
    a(valu("v_xor_b32",y,sHH,hb)); a(valu("v_lshlrev_b32",y,6,y)); a(valu("v_lshl_add_u32",y,x,7,y))
    a(valu("v_lshl_add_u32",y,g0,5,y)); a(valu("v_lshl_add_u32",y,cS,3,y))
    a(salu("s_mul_i32",sT0,sPM,12288)); a(salu("s_add_u32",sT1,sT0,W1BASE)); a(salu("s_sub_u32",sT2,W1BASE,sT0))
    a(valu("v_add_u32",W1LO,sT1,y)); a(valu("v_add_u32",W1HI,sT2,y))
    a(valu("v_and_b32",pc,1,cS)); a(valu("v_lshlrev_b32",pc,1,pc)); a(valu("v_lshrrev_b32",z,1,cS)); a(valu("v_add_u32",pc,pc,z))
    a(valu("v_mul_u32_u24",y,384,x)); a(valu("v_lshl_add_u32",y,g0,5,y)); a(valu("v_lshl_add_u32",y,pc,3,y))
    a(valu("v_xor_b32",z,sHN,hb)); a(valu("v_lshl_add_u32",z,z,6,y))
    a(salu("s_sub_u32",sT1,12288,sT0))
    a(valu("v_add_u32",W2A(0),sT0,z)); a(valu("v_add_u32",W2A(1),sT1,z))
    a(salu("s_add_u32",sT1,sT0,HBASE)); a(valu("v_add_u32",HR,sT1,l16))
    a(salu("s_lshl_b32",sT2,sHN,11)); a(valu("v_add_u32",HW,sT2,HR))
    a(salu("s_lshl_b32",sT1,sHH,1)); a(salu("s_add_u32",sT1,sT1,sPM)); a(salu("s_lshl_b32",sT1,sT1,10)); a(valu("v_add_u32",P12W,sT1,l16))
    gc=t[20]
    a(valu("v_lshl_add_u32",gc,g,4,cS)); a(valu("v_lshlrev_b32",gc,4,gc)); a(valu("v_lshl_add_u32",x,rp,2,gc))
    a(salu("s_lshl_b32",sT1,sHH,11)); a(salu("s_lshl_b32",sT2,sPM,6)); a(salu("s_add_u32",sT1,sT1,sT2)); a(salu("s_add_u32",sT1,sT1,P12))
    a(valu("v_add_u32",P12R,sT1,x))
    a(valu("v_lshlrev_b32",x,6,g0)); a(valu("v_lshl_add_u32",x,cS,4,x)); a(valu("v_lshl_add_u32",x,g1,3,x)); a(valu("v_lshl_add_u32",x,rp,1,x))
    a(salu("s_lshl_b32",sT1,sHH,8)); a(salu("s_lshl_b32",sT2,sPM,7)); a(salu("s_add_u32",sT1,sT1,sT2)); a(salu("s_add_u32",sT1,sT1,H12))
    a(valu("v_add_u32",H12W,sT1,x))
    a(valu("v_cmp_eq_u32","vcc",rp,g0))
    a(valu("v_lshlrev_b32",x,6,g1)); a(valu("v_lshl_add_u32",x,cS,4,x)); a(valu("v_mov_b32",z,ZB))
    a(salu("s_lshl_b32",sT1,sPM,8)); a(salu("s_add_u32",sT1,sT1,H12)); a(valu("v_add_u32",y,sT1,x)); a(valu("v_cndmask_b32",H12R,z,y,"vcc"))
    a(valu("v_lshlrev_b32",y,9,g1)); a(valu("v_lshl_add_u32",y,cS,4,y)); a(valu("v_add_u32",z,64,y)); a(valu("v_cndmask_b32",y,z,y,"vcc"))
    a(salu("s_mul_i32",sT1,sPM,6144)); a(salu("s_add_u32",sT1,sT1,XEX(6))); a(valu("v_add_u32",y,sT1,y)); park(a,"x12a",y)
    a(salu("s_mov_b32",sT2,-7)); a(salu("s_movk_i32",sT3,400)); a(salu("s_lshl_b32",sT1,sHN,6))
    ch,oh,ow=t[17],t[18],t[19]
    a(valu("v_lshl_add_u32",ch,g1,4,sT1)); a(valu("v_lshrrev_b32",oh,1,rp)); a(valu("v_and_b32",ow,1,rp))
    fix=t[21]
    a(valu("v_mul_u32_u24",fix,RPS-2560,oh)); a(valu("v_lshl_add_u32",fix,ow,7,fix)); a(valu("v_add_u32",fix,RPS+2560+384,fix))
    a(salu("s_lshl_b32",sT0,sPM,3)); a(salu("s_movk_i32",sCNT,RPS))
    for s in range(3):
        P,Rr,Cc,x,y=t[9],t[15],t[16],t[22],t[23]
        a(valu("v_lshl_add_u32",P,g0,2,cS)); a(valu("v_add_u32",P,sT0,P))
        if s: a(valu("v_add_u32",P,16*s,P))
        a(valu("v_mul_u32_u24",Rr,0x2493,P)); a(valu("v_lshrrev_b32",Rr,16,Rr)); a(valu("v_mad_i32_i24",Cc,Rr,sT2,P))
        a(valu("v_mad_u32_u24",x,Rr,sCNT,fix)); a(valu("v_lshl_add_u32",x,Cc,8,x))
        a(valu("v_add3_u32",y,Cc,ow,1)); a(valu("v_and_b32",y,7,y)); a(valu("v_lshlrev_b32",y,4,y)); a(valu("v_xor_b32",y,y,ch))
        a(valu("v_add_u32",RLA(s,0),x,y)); a(valu("v_xad_u32",RLA(s,1),y,32,x))
        a(valu("v_lshl_add_u32",Rr,Rr,1,oh)); a(valu("v_lshl_add_u32",Cc,Cc,1,ow))
        a(valu("v_mad_u32_u24",P,Rr,14,Cc)); a(valu("v_mad_u32_u24",P,P,sT3,ch)); a(valu("v_add_u32",OSW(s),OS,P))
    for k in range(3):
        x=t[9]
        a(valu("v_add_u32",x,56*k,L)); a(valu("v_mul_u32_u24",t[15],0xaab,x)); a(valu("v_lshrrev_b32",t[15],16,t[15]))
        a(valu("v_add_u32",x,x,t[15])); a(valu("v_lshlrev_b32",x,4,x)); a(valu("v_add_u32",OSR(k),OS,x))
    a(valu("v_cmp_gt_u32","vcc",56,L)); a(valu("v_mov_b32",t[9],0x80000000)); a(nop(0)); a(valu("v_cndmask_b32",L16S,t[9],l16,"vcc"))
    lc,x,y=t[9],t[15],t[16]
    a(salu("s_lshl_b32",sT0,sPM,1)); a(valu("v_mov_b32",lc,sT0)); a(valu("v_cmp_eq_u32","vcc",0,oh)); a(nop(1)); a(valu("v_cndmask_b32",lc,1,lc,"vcc"))
    a(valu("v_lshl_add_u32",x,ow,6,gc)); a(valu("v_lshl_add_u32",x,lc,12,x)); a(salu("s_lshl_b32",sT0,sHN,11)); a(valu("v_add_u32",A12R,sT0,x))
    a(valu("v_lshl_add_u32",x,g0,1,g1)); a(valu("v_lshlrev_b32",x,3,x)); a(valu("v_lshl_add_u32",x,ow,5,x)); a(valu("v_lshl_add_u32",x,lc,7,x)); a(valu("v_add_u32",x,sT1,x))
    a(valu("v_lshrrev_b32",y,1,cS)); a(valu("v_and_b32",lc,1,cS))
    a(valu("v_mul_u32_u24",t[17],ROWB,y)); a(valu("v_mul_u32_u24",t[18],384,lc)); a(valu("v_add3_u32",R12V,t[17],t[18],x)); a(valu("v_add_u32",R12V,12*ROWB+12*384,R12V))
    a(valu("v_mad_u32_u24",y,y,14,lc)); a(valu("v_mad_u32_u24",y,y,sT3,x)); a(valu("v_add_u32",O12W,OS+(12*14+12)*400,y))
    key,val,x=t[9],t[15],t[16]
    a(valu("v_bfe_u32",key,L,3,2)); a(valu("v_lshlrev_b32",key,1,key)); a(valu("v_bfe_u32",x,L,1,1)); a(valu("v_add_u32",key,key,x))
    a(valu("v_and_b32",x,1,rp)); a(valu("v_xor_b32",x,x,g1)); a(valu("v_lshl_add_u32",key,x,4,key))
    a(valu("v_and_b32",x,1,L)); a(valu("v_lshlrev_b32",x,4,x)); a(valu("v_mov_b32",val,0x3f80)); a(valu("v_lshlrev_b32",val,x,val))
    for d in range(8):
        a(valu("v_cmp_eq_u32","vcc",d,key)); a(nop(1)); a(valu("v_cndmask_b32",x,0,val,"vcc")); a(valu("v_accvgpr_write_b32",A(240+d),x))
    x,y,n,C,e5,sp=t[9],t[15],t[16],t[17],t[18],t[19]
    a(valu("v_lshrrev_b32",x,2,L)); a(valu("v_lshlrev_b32",x,6,x))
    a(salu("s_lshl_b32",sT0,sW,10)); a(salu("s_add_u32",sT1,sT0,STB)); a(valu("v_add_u32",y,sT1,x)); park(a,"stw",y)
    a(salu("s_xor_b32",sT0,sT0,1024)); a(salu("s_add_u32",sT1,sT0,STB)); a(valu("v_add_u32",y,sT1,x)); park(a,"str",y)
    a(salu("s_lshl_b32",sT0,sPM,2)); a(valu("v_add_u32",C,sT0,rp))
    a(salu("s_lshl_b32",sT1,sHN,11)); a(valu("v_lshl_add_u32",e5,cS,9,sT1))
    a(valu("v_lshl_add_u32",sp,g,4,e5)); a(valu("v_add_u32",sp,XEX(6),sp))
    a(valu("v_cmp_gt_u32",MB2,7,C)); a(valu("v_mov_b32",x,sNA)); a(valu("v_add_u32",t[20],64,sp)); a(valu("v_cndmask_b32",NAV,0,x,MB2))
    a(valu("v_lshlrev_b32",t[21],2,g)); a(valu("v_lshlrev_b32",t[22],1,cS)); a(valu("v_xor_b32",t[21],t[21],t[22]))
    a(salu("s_movk_i32",sT2,12288)); a(salu("s_movk_i32",sT3,10240))
    for R_ in range(7):
        P=t[23]
        a(valu("v_add_u32",P,7*R_,C))
        a(valu("v_and_b32",n,3,P)); a(valu("v_xor_b32",n,n,t[21])); a(valu("v_lshl_add_u32",n,n,4,e5))
        a(valu("v_bfe_u32",x,P,2,1)); a(valu("v_lshl_add_u32",n,x,8,n))
        a(valu("v_lshrrev_b32",x,3,P)); a(valu("v_mad_u32_u24",n,x,sT2,n))
        if R_>=3:
            a(valu("v_lshrrev_b32",x,5,P)); a(valu("v_mad_u32_u24",n,x,sT3,n))
        if R_==6:
            a(valu("v_cmp_eq_u32","vcc",48,P)); a(nop(1)); a(valu("v_cndmask_b32",n,n,sp,"vcc"))
        a(valu("v_cndmask_b32",n,t[20],n,MB2)); park(a,f"xw{R_}",n)
    a(valu("v_lshlrev_b32",n,1,g1)); a(valu("v_xor_b32",n,n,L)); a(valu("v_lshlrev_b32",n,4,n))
    a(salu("s_mul_i32",sT0,sPM,18432)); a(salu("s_mul_i32",sT1,sPM,6144)); a(salu("s_add_u32",sT1,sT1,6144))
    a(valu("v_add_u32",x,sT0,n)); park(a,"xa00",x); a(valu("v_xor_b32",x,64,x)); park(a,"xa10",x)
    a(valu("v_add_u32",x,sT1,n)); park(a,"xa01",x); a(valu("v_xor_b32",x,64,x)); park(a,"xa11",x)
    a(salu("s_mov_b32","vcc_lo",0xaaaaaaaa)); a(salu("s_mov_b32","vcc_hi",0xaaaaaaaa))
    for i in c:
        if i.kind=="vld": i.wr=set(); i.txt=i.txt.replace("v231","a90")
    return c
def sU(u): return 16*u if u<=4 else UREG[u]

def w1_dma(slot,flat=False):
    out=[]
    for i in range(6):
        m=salu("s_add_u32","m0",sM1,W1OFF[slot]+4096*(i//4)) if i%4==0 else None
        s=salu("s_add_u32",sT0,sW1O,(i>>1)*24576+(i&1)*3072-1024*(i%4))
        d=dma(DW1,SW1,sT0,off=1024*(i%4))
        out.append((m,s,d))
    adv=salu("s_add_u32",sW1O,sW1O,128)
    if flat: return [x for tr in out for x in tr if x is not None]+[adv]
    return out,adv
def w2_dma(slot):
    out=[]
    for i in range(6):
        m=salu("s_add_u32","m0",sM2,W2S[slot]+4096*(i//4)) if i%4==0 else None
        s=salu("s_add_u32",sW2O,sW2O,4096) if i==4 else None
        d=dma(DW2(i%3),SW2,sW2O,off=1024*(i%4))
        out.append((m,s,d))
    adv=salu("s_add_u32",sW2O,sW2O,24576-4096)
    return out,adv

TR="ds_read_b64_tr_b16"
def conv_reads(ch,i):
    n=8*ch+i; slot=(ch&1)*5120
    Ar=[dsr(TR,AR(n).sub(2*th,2),CA(th),8*(16*ch+i)) for th in range(4)]
    Br=[dsr(TR,BETA(n).sub(2*r,2),CB(i>>1,r//5),(r%5)*RPS+slot+8*(i&1)) for r in range(10)]
    return Ar,Br
def conv_chunk(ch,state):
    c=[]
    A0,B0=conv_reads(ch,0)
    def sel(r):
        d=CD(r); R_=r%7; k=r//7
        return [valu("v_cndmask_b32",d.sub(0),d.sub(0),d.sub(1),"vcc"),valu("v_cndmask_b32",d.sub(2),d.sub(2),d.sub(3),"vcc"),
                valu("v_cndmask_b32",RES(R_,k),d.sub(0),d.sub(2),MB1)]
    r0=56*ch
    for i in range(8):
        n=8*ch+i
        nx=[]
        if i<7:
            Ar,Br=conv_reads(ch,i+1); nx=Ar[:2]+Br[:2]+Ar[2:]+Br[2:]
        elif ch<2:
            nx=conv_reads(ch+1,0)[0]
        for R_ in range(7):
            r=r0+7*i+R_; d=CD(r)
            s_=sel(r-2) if r-2>=r0 else []
            c.append(mfma(16,d,AR(n).sub(0,4),BETA(n).sub(2*R_,4),0))
            if nx: c.append(nx.pop(0))
            c+=s_[:2]
            c.append(mfma(16,d,AR(n).sub(4,4),BETA(n).sub(2*R_+4,4),d))
            if nx: c.append(nx.pop(0))
            c+=s_[2:]
    tail=sel(r0+54)+sel(r0+55)
    return A0,B0,c,tail

def pk(op,d,*srcs,mod=""): return valu(op,d,*srcs,mod=mod)
def pair(R_,k): return V(RES(R_,k).n,2)
def SQ(R_): return (V(32+2*R_,2),V(76+2*R_,2) if R_<6 else V(46,2))
def stats_chunk(ch):
    c=[]
    for k in range(8*ch,8*ch+8,2):
        for R_ in range(7):
            S,Q=SQ(R_); x=pair(R_,k)
            if k==0: c.append(pk("v_pk_mul_f32",Q,x,x))
            else: c.append(pk("v_pk_fma_f32",Q,x,x,Q))
            if k==2: c.append(pk("v_pk_add_f32",S,pair(R_,0),x))
            elif k>2: c.append(pk("v_pk_add_f32",S,S,x))
    return c
def spread(c,extra,start,step):
    out=[]; m=0; extra=list(extra)
    for i in c:
        out.append(i)
        if i.kind=="mfma":
            if extra and m>=start and (m-start)%step==0: out+=extra.pop(0)
            m+=1
    for e in extra: out+=e
    return out
def xdma(ch):
    return [[salu("s_add_u32","m0",sM0X(k),5120*(ch&1)),nop(0),dma(XV(k),SX,sT2,aux=XAUX)] for k in range(13)]
def resreads(ch):
    return [[dsr("ds_read_b128",resfrag(3*s+ch,q),RLA(s,q),5120*(ch&1))] for s in range(3) for q in range(2)]
def conv_all():
    A0,B0,c0,t0=conv_chunk(0,None); A1,B1,c1,t1=conv_chunk(1,None); A2,B2,c2,t2=conv_chunk(2,None)
    NE=int(os.environ.get("NEARLY","13"))
    x1=xdma(1)
    w10=w1_dma(0)
    w1l=[[x for x in tr if x is not None] for tr in w10[0]]; w1l[-1].append(w10[1])
    c=[salu("s_movk_i32",sT2,128)]+[i for g in x1[:NE] for i in g]
    c+=[wait(vm=NE+NPF),barrier()]+A0[:2]+B0[:2]+A0[2:]+B0[2:]
    x2p=[]
    if X2P:
        for k in range(13):
            i=bload(1,A(90),XV(k),SX,0,off=256); i.wr=set(); x2p.append([i])
    c0=spread(c0,x1[NE:]+x2p+w1l,2,4); c0=spread(c0,resreads(0),103,1)
    c+=c0+t0
    c+=[wait(vm=6+len(x2p),lgkm=0),barrier()]
    c.append(salu("s_movk_i32",sT2,256))
    c1=spread(c1,resreads(1),103,1)
    c+=B1+[i for g in xdma(2) for i in g]+c1+t1
    c+=stats_chunk(0)
    c+=[wait(vm=0,lgkm=0),barrier()]
    c2=spread(c2,resreads(2),99,1)
    c+=B2+stats_chunk(1)+c2+t2
    return c

def layernorm():
    c=[]; a=c.append
    def unpark(name,reg): a(valu("v_accvgpr_read_b32",reg,PARK[name]))
    T=range(7)
    S=[SQ(i)[0] for i in T]; Q=[SQ(i)[1] for i in T]
    stw,str_,l16=V(72),V(73),V(74)
    unpark("stw",stw); unpark("str",str_)
    c+=stats_chunk(2)
    for i in T: a(valu("v_add_f32",S[i].sub(0),S[i].sub(0),S[i].sub(1))); a(valu("v_add_f32",S[i].sub(1),Q[i].sub(0),Q[i].sub(1)))
    for qp in ("[1,0,3,2]","[2,3,0,1]"):
        for i in T:
            for h in (0,1): a(valu("v_add_f32_dpp",S[i].sub(h),S[i].sub(h),S[i].sub(h),mod=f"quad_perm:{qp} row_mask:0xf bank_mask:0xf"))
    for k in range(3): a(dsw("ds_write_b128",stw,V(32+4*k,4),16*k))
    a(dsw("ds_write_b64",stw,S[6],48))
    a(wait(lgkm=0)); a(barrier())
    PS=V(48,16)
    for k in range(4): a(dsr("ds_read_b128",PS.sub(4*k,4),str_,16*k))
    for k in range(12): c+=w1_reads(k,0)
    c+=w1_dma(1,flat=True)
    Z=V(76,4)
    a(valu("v_mov_b64",Z.sub(0,2),0)); a(valu("v_mov_b64",Z.sub(2,2),0)); a(valu("v_lshlrev_b32",l16,4,L))
    a(dsw("ds_write_b128",l16,Z,ZB))
    for i in T: unpark(f"xw{i}",V(64+i))
    for i in T: a(pk("v_pk_add_f32",S[i],S[i],PS.sub(2*i,2)))
    a(salu("s_mov_b32",sT1,f32(1/192)))
    for i in T: a(valu("v_mul_f32",S[i].sub(0),sT1,S[i].sub(0)))
    for i in T: a(valu("v_mul_f32",Q[i].sub(0),S[i].sub(0),S[i].sub(0)))
    for i in T:
        x=valu("v_fma_f32",Q[i].sub(0),S[i].sub(1),sT1,Q[i].sub(0)); x.txt=x.txt.replace(f", {Q[i].sub(0)}",f", -{Q[i].sub(0)}"); a(x)
    for i in T: a(valu("v_max_f32",Q[i].sub(0),0,Q[i].sub(0)))
    for i in T: a(valu("v_add_f32",Q[i].sub(0),f32(1e-5),Q[i].sub(0)))
    for i in T: a(valu("v_rsq_f32",Q[i].sub(0),Q[i].sub(0)))
    for i in T: a(valu("v_mul_f32",Q[i].sub(0),NAV,Q[i].sub(0)))
    for i in T:
        x=valu("v_mul_f32_e64",Q[i].sub(1),S[i].sub(0),Q[i].sub(0)); x.txt=x.txt.replace(f", {S[i].sub(0)}",f", -{S[i].sub(0)}"); a(x)
    M="op_sel:[0,0,1] op_sel_hi:[1,0,1]"
    for i in T:
        for ch in range(3):
            for k in range(8*ch,8*ch+8,2): a(pk("v_pk_fma_f32",pair(i,k),pair(i,k),Q[i],Q[i],mod=M))
            for j in range(4): a(valu("v_cvt_pk_bf16_f32",RES(i,8*ch+j),RES(i,8*ch+2*j),RES(i,8*ch+2*j+1)))
            a(dsw("ds_write_b128",V(64+i),V(RES(i,8*ch).n,4),4096*ch))
    for p_ in range(2):
        for h in range(2): unpark(f"xa{p_}{h}",XA(p_,h))
    unpark("x12a",X12A)
    a(wait(lgkm=0)); a(barrier())
    return c
def XA(p,h): return V(108+2*p+h)
X12A=V(96)
def xread(s,k): return dsr("ds_read_b128",XF(s,k),XA(k&1,int(k>=6)),XEX(2*s)+(k%6)*1024)
def resfrag(tl,q):
    f=2*tl+q
    if f<10: return XF(2,f)
    f-=10
    return A(216+4*f,4) if f<6 else A(248+4*(f-6),4)

def w1_reads(k,slot):
    return [dsr(TR,W1F(k).sub(2*rd,2),W1LO if k<6 else W1HI,(32*(k>>1)+16*rd+8*(k&1))*128+W1OFF[slot]) for rd in range(2)]
def w2_reads(dst,k,lct,slot):
    return [dsr(TR,dst.sub(2*rd,2),W2A(k>>1),(16*k+8*rd)*384+128*lct+W2S[slot]-(12288 if k>=2 else 0)) for rd in range(2)]

def gelu_group(src,gi,stg,extra=None):
    ts=[GT(4*(gi%2)+j) for j in range(4)]; xs=[src.sub(j) for j in range(4)]
    if extra: xs=xs+[extra[0]]; ts=ts+[extra[1]]
    n=len(xs); f=[]
    for j in range(n): f.append(valu("v_fmaak_f32",ts[j],xs[j],xs[j],f32(CC)))
    for j in range(n): f.append(valu("v_mul_f32",ts[j],ts[j],xs[j]))
    for j in range(n): f.append(valu("v_exp_f32",ts[j],ts[j]))
    for j in range(n): f.append(valu("v_fma_f32",ts[j],ts[j],sNA,sNA))
    for j in range(n): f.append(valu("v_rcp_f32",ts[j],ts[j]))
    for j in range(n): f.append(valu("v_mul_f32",ts[j],ts[j],xs[j]))
    f.append(valu("v_cvt_pk_bf16_f32",stg.sub(0),ts[0],ts[1])); f.append(valu("v_cvt_pk_bf16_f32",stg.sub(1),ts[2],ts[3]))
    if extra: f.append(valu("v_cvt_pk_bf16_f32",extra[1],extra[1],extra[1]))
    return f

class Op:
    def __init__(s,inst,lo=0,hi=10**6,then=None,pre=None): s.i=inst; s.lo=lo; s.hi=hi; s.then=then; s.pre=pre
def schedule(M,vs,mem,sal,memcap=1,thens=None):
    n=len(M); out=[]; vs=list(vs); mem=list(mem); rel=[]; thens=dict(thens or {})
    def rem(): return sum(o.i.cost+(o.then.i.cost if o.then else 0) for o in vs)+sum(o.i.cost for o in mem+rel+list(thens.values()))
    quiet=-1
    for g in range(n):
        wsum=sum(m.passes for m in M[g:])
        budget=(rem()+8*(n-g))*M[g].passes/wsum
        out.append(M[g]); acc=8
        for k,s in enumerate(sal.get(g,[])):
            out.append(s); acc+=4 if k else 0
        if g in thens: rel.append(thens.pop(g))
        k=0
        for o in [o for o in rel if o.lo<=g][:1]:
            out.append(o.i); acc+=o.i.cost; rel.remove(o); k+=memcap; quiet=g+QUIET
        av=sorted([o for o in mem if o.lo<=g],key=lambda o:o.hi)
        for idx,o in enumerate(av):
            urgent=any(sum(1 for x in mem if x.hi<=y.hi)>(y.hi-g-1)*memcap for y in av[idx:idx+6] if y in mem)
            if o.hi>g+1 and not urgent and (k>=memcap or g<=quiet): break
            if k>=max(2,memcap) and o.hi>g+1: break
            out.append(o.i); acc+=o.i.cost; mem.remove(o); k+=1
        force=max([i for i,o in enumerate(vs) if o.hi<=g+1],default=-1)
        cnt=0
        while vs and vs[0].lo<=g and (cnt<=force or acc+vs[0].i.cost/2<=budget):
            o=vs.pop(0); out.append(o.i); acc+=o.i.cost; cnt+=1
            if o.then: o.then.lo=max(o.then.lo,g+1); rel.append(o.then)
        assert cnt>force,("valu deadline",g)
    assert not mem and not thens,(len(mem),)
    for o in vs:
        out.append(o.i)
        if o.then: rel.append(o.then)
    for o in rel: out.append(o.i)
    return out

LEAD=int(os.environ.get("LEAD","4")); QUIET=int(os.environ.get("QUIET","1"))
def interval(j):
    p=j%2; first=(j==0); last=(j==11)
    M=[]; pos={}; gi={}; w1use={}; w2last={}; thens={}
    def g1(s,buf,t12=False):
        pos[f"b{s}"]=len(M)
        for k in range(12):
            w1use[(s,k)]=len(M); M.append(mfma(32,D(buf),W1F(k),XF(s,k),D(buf) if k else 0))
            if t12 and k%2==1:
                M.append(mfma(16,D12,W1F(k//2),X12F(k//2),D12 if k>1 else 0))
        pos[f"e{s}"]=len(M)
        if t12: thens[len(M)+2]=Op(dsw("ds_write_b128",P12W,D12,P12+4096*(1-p)))
    def g2(a_,b_):
        for i in range(a_,b_):
            gi[i]=len(M)
            if first:
                tl,q=i//2,i%2; M.append(mfma(32,ACC(tl//3,tl%3),IDF(q),resfrag(tl,q),ACC(tl//3,tl%3) if q else 0))
            else:
                k,l,s=i//9,(i//3)%3,i%3
                M.append(mfma(32,ACC(s,l),W2F(3*k+l),HF(3*k+s),ACC(s,l)))
                if k<2 and s==1: gi[("t",3*k+l)]=len(M); M.append(mfma(16,ACC12(l),W2F(3*k+l),H12F(k),ACC12(l)))
    cuts=[10,14,18] if first else [12,24,36]
    g1(1,1-p); g2(0,cuts[0]); g1(2,p); g2(cuts[0],cuts[1])
    if not last: g1(0,1-p,True)
    g2(cuts[1],cuts[2])
    n=len(M)
    mem=[]; sal={}
    if not first:
        for ph in range(12):
            lo=0 if ph<4 else gi[3*(ph-4)+2]
            for x in w2_reads(W2F(ph),ph//3,ph%3,1-p): mem.append(Op(x,lo,gi[3*ph]-LEAD+1))
        for k in range(4):
            for s in range(3):
                lo=0 if k<2 else gi[9*(k-2)+6+s]
                mem.append(Op(dsr("ds_read_b128",HF(3*k+s),HR,HOFF[1-p]+(4*s+k)*1024),lo,gi[9*k+s]-LEAD+1))
        for k in range(2): mem.append(Op(dsr("ds_read_b128",H12F(k),H12R,512*(1-p)+128*k),0,gi[("t",3*k)]-LEAD+1))
    else:
        for k in range(XPRE,12): mem.append(Op(xread(1,k),0,max(1,k-LEAD+1)))
        for k in range(12): mem.append(Op(xread(2,k),gi[k] if k<10 else 0,pos["b2"]+k-LEAD+1))
    mem.append(Op(dsr("ds_read2st64_b32",T12T.sub(0,2),P12R,mod=f"offset0:{16*p} offset1:{16*p+4}"),0,3))
    if not last:
        for k in range(12):
            for x in w1_reads(k,1-p): mem.append(Op(x,w1use[(2,k)],w1use[(0,k)]-LEAD+1))
    lists=[]
    if not last: lists.append(w1_dma(p))
    lists.append(w2_dma(p))
    step=int(os.environ.get("DSTEP","5"))
    if first: step=3
    g=1
    for tr,adv in lists:
        for m,s,d in tr:
            if m is not None: sal.setdefault(g-1,[]).append(m)
            if s is not None: sal.setdefault(g,[]).append(s)
            mem.append(Op(d,g,g+1)); g+=step
        sal.setdefault(g-step+1,[]).append(adv)
    vs=[]; gc=[1]
    def grp(s,buf,g,lo,hi,hb,extra=None):
        fr=g>>1; stg=STG(fr)
        ops=gelu_group(D(buf).sub(4*g,4),gc[0],stg.sub(2*(g&1),2),extra); gc[0]+=1
        o=[Op(x,lo,hi) for x in ops]
        k=-2 if extra else -1
        if g&1: o[k].then=Op(dsw("ds_write_b128",HW,stg,HOFF[hb]+(4*s+fr)*1024))
        if extra: o[-1].then=Op(dsw("ds_write_b16",H12W,extra[1],512*p))
        return o
    if first:
        for l in range(3):
            for h in range(2): vs.append(Op(valu("v_mov_b64",ACC12(l).sub(2*h,2),0)))
    vs+=grp(0,p,1,0,pos["b2"],p)
    vs+=[Op(valu("v_add_f32",T12T.sub(0),T12T.sub(0),T12T.sub(1)),4)]
    vs+=grp(0,p,2,0,pos["b2"],p,extra=(T12T.sub(0),T12T.sub(1)))
    vs+=grp(0,p,3,0,pos["b2"],p)
    for g_ in range(4): vs+=grp(1,1-p,g_,pos["e1"]+2,pos.get("b0",10**6),p)
    for g_ in range(4): vs+=grp(2,p,g_,pos["e2"]+2,(n-3) if not last else 10**6,p)
    if not last: vs+=grp(0,1-p,0,pos["e0"]+2,10**6,1-p)
    KO=os.environ.get("KO","").split(",")
    if "dma" in KO: mem=[o for o in mem if o.i.kind!="dma"]
    if "dsw" in KO:
        for o in vs: o.then=None
    if "dsr" in KO: mem=[o for o in mem if o.i.kind!="dsr"]
    c=schedule(M,vs,mem,sal,thens=thens)
    return c

XPRE=6
def pre_interval():
    M=[]
    for k in range(12): M.append(mfma(32,D(0),W1F(k),XF(0,k),D(0) if k else 0))
    for k in range(6): M.append(mfma(16,D12,W1F(k),X12F(k),D12 if k else 0))
    c=[xread(0,k) for k in range(6)]
    mem=[Op(xread(0,k),0,k-3) for k in range(6,12)]
    for k in range(6): mem.append(Op(dsr("ds_read_b128",X12F(k),X12A,1024*k),0,9))
    for k in range(XPRE): mem.append(Op(xread(1,k),0,12))
    gl=[Op(x,16) for x in gelu_group(D(0).sub(0,4),0,STG(0).sub(0,2))]
    gl[-8].then=Op(dsw("ds_write_b128",P12W,D12,P12))
    c+=schedule(M,gl,mem,{},memcap=2)
    c+=[wait(vm=0,lgkm=0),barrier()]
    return c

def final():
    c=[]; a=c.append
    p=1
    def WF(k,l): return W1F(3*k+l)
    M=[]; end={}; thens={}
    A12W=V(110)
    for s in range(3):
        for l in range(3):
            for k in range(4): M.append(mfma(32,ACC(s,l),WF(k,l),XF(0,4*s+k),ACC(s,l)))
            end[(s,l)]=len(M)
            if s==0:
                for k in range(2): M.append(mfma(16,ACC12(l),WF(k,l),H12F(k),ACC12(l)))
                thens[len(M)+3]=Op(dsw("ds_write_b128",A12W,ACC12(l),4096*l))
    def hr(s,k): return dsr("ds_read_b128",XF(0,4*s+k),HR,HOFF[p]+(4*s+k)*1024)
    R12=V(108,2)
    for k in range(4): c+=w2_reads(WF(k,0),k,0,p)+[hr(0,k)]
    a(bload(2,R12,R12V,SX,sTB))
    mem=[]
    for k in range(2): mem.append(Op(dsr("ds_read_b128",H12F(k),H12R,512*p+128*k),0,1))
    for l in (1,2):
        for k in range(4):
            for x in w2_reads(WF(k,l),k,l,p): mem.append(Op(x,0,6*l+k-3))
    for s in (1,2):
        for k in range(4): mem.append(Op(hr(s,k),0,14))
    vs=[Op(valu("v_lshlrev_b32",A12W,4,L)),Op(valu("v_add_u32",A12W,sT0,A12W))]
    sal={0:[salu("s_lshl_b32",sT0,sHN,1),salu("s_add_u32",sT0,sT0,sPM),salu("s_lshl_b32",sT0,sT0,10)]}
    def epi(s,l,lo):
        o=[]
        for q in range(2):
            r=ACC(s,l)
            for j in range(4): o.append(Op(valu("v_cvt_pk_bf16_f32",r.sub(8*q+j),r.sub(8*q+2*j),r.sub(8*q+2*j+1)),lo))
            o[-1].then=Op(dsw("ds_write_b128",OSW(s),r.sub(8*q,4),128*l+32*q))
        return o
    SB=[V(48+4*i,4) for i in range(8)]
    sRow,sRow2="s70","s71"; RA=[V(32+i) for i in range(3)]
    def row_setup(r0):
        return [salu("s_add_u32",sT0,sW,r0),salu("s_mul_i32",sRow,sT0,ROWB),salu("s_add_u32",sRow,sRow,sTB),salu("s_add_u32",sRow2,sRow,2688),
                salu("s_mul_i32",sT0,sT0,5600)]+[valu("v_add_u32",RA[k],sT0,OSR(k)) for k in range(3)]
    def row_ops(b0):
        rd=[dsr("ds_read_b128",SB[(b0+k)%8],RA[k%3],2800*(k//3)) for k in range(6)]
        st=[bstore(4,SB[(b0+k)%8],L16S,SOUT,sRow if k<3 else sRow2,off=896*(k%3),aux=STAUX) for k in range(6)]
        return rd,st
    C1,C2=24,36
    for l in range(3): vs+=epi(0,l,end[(0,l)]+3)
    c+=schedule(M[:C1],vs,mem,sal,memcap=3,thens=thens)
    c+=row_setup(0)
    c+=[wait(lgkm=0),barrier()]
    rd,st=row_ops(0)
    PT=V(84,8)
    mem=[Op(x,0,2) for x in rd]+[Op(x,3+i,4+i) for i,x in enumerate(st)]
    mem+=[Op(dsr("ds_read_b128",PT.sub(4*i,4),A12R,1024*i),0,3) for i in range(2)]
    vs=[]
    t12=[]
    for j in range(4): t12.append(valu("v_add_f32",PT.sub(j),PT.sub(j),PT.sub(4+j)))
    for j in range(2):
        t12.append(valu("v_lshlrev_b32",PT.sub(4+2*j),16,R12.sub(j))); t12.append(valu("v_and_b32",PT.sub(5+2*j),0xffff0000,R12.sub(j)))
    for j in range(4): t12.append(valu("v_add_f32",PT.sub(j),PT.sub(j),PT.sub(4+j)))
    t12+=[valu("v_cvt_pk_bf16_f32",PT.sub(0),PT.sub(0),PT.sub(1)),valu("v_cvt_pk_bf16_f32",PT.sub(1),PT.sub(2),PT.sub(3))]
    t12=[Op(x,5) for x in t12]; t12[-1].then=Op(dsw("ds_write_b64",O12W,PT.sub(0,2)))
    vs+=epi(1,0,max(0,end[(1,0)]+3-C1))+epi(1,1,end[(1,1)]+3-C1)+t12+epi(1,2,end[(1,2)]+3-C1)
    c+=schedule(M[C1:C2],vs,mem,{},memcap=3)
    c+=row_setup(4)
    c+=[wait(lgkm=0),barrier()]
    rd,st=row_ops(6)
    mem=[Op(x,0,2) for x in rd]+[Op(x,3+i//2,4+i//2) for i,x in enumerate(st)]
    vs=epi(2,0,end[(2,0)]+3-C2)+epi(2,1,end[(2,1)]+3-C2)
    c+=schedule(M[C2:],vs,mem,{},memcap=3)
    RB=[V(36+i) for i in range(3)]; sR3="s72"
    c+=row_setup(8)
    c+=[salu("s_mul_i32",sT0,sPM,ROWB),salu("s_mul_i32",sT1,sHN,2688),salu("s_add_u32",sR3,sT0,sT1),salu("s_add_u32",sR3,sR3,sTB),salu("s_add_u32",sR3,sR3,12*ROWB),
        salu("s_mul_i32",sT0,sW,2800),salu("s_add_u32",sT0,sT0,12*5600)]
    c+=[valu("v_add_u32",RB[k],sT0,OSR(k)) for k in range(3)]
    for o in epi(2,2,0):
        c.append(o.i)
        if o.then: c.append(o.then.i)
    c+=[wait(lgkm=0),barrier()]
    rd,st=row_ops(4)
    c+=rd
    SC=[V(84+4*i,4) for i in range(3)]
    c+=[dsr("ds_read_b128",SC[k],RB[k]) for k in range(3)]
    c+=st
    c+=[bstore(4,SC[k],L16S,SOUT,sR3,off=896*k,aux=STAUX) for k in range(3)]
    return c

NST=[0]
def stamp():
    k=NST[0]; NST[0]+=1
    if os.environ.get("RT"): return [raw("s_memrealtime s[92:93]"),wait(lgkm=0),raw(f"s_sub_u32 s{74+k}, s92, s95")]
    return [raw("s_memtime s[92:93]"),wait(lgkm=0),raw(f"s_sub_u32 s{74+k}, s92, s94")]
def add_stamps(code):
    out=[]
    for i in code:
        out.append(i)
        if i.kind=="barrier": out+=stamp()
    return out
def dump_stamps():
    c=[wait(vm=0)]+stamp()
    c+=[raw("s_memrealtime s[92:93]"),raw("s_load_dwordx2 s[4:5], s[0:1], 48"),wait(lgkm=0),raw(f"s_sub_u32 s{74+NST[0]}, s92, s95"),
        raw("s_mov_b32 s6, 0x1000000"),raw("s_mov_b32 s7, 0x20000"),raw("s_lshl_b32 s8, s2, 2"),raw(f"s_add_u32 s8, s8, {sW}"),raw("s_lshl_b32 s8, s8, 7"),raw("v_mov_b32 v1, s8")]
    for k in range(NST[0]+1):
        c+=[raw(f"v_mov_b32 v2, s{74+k}"),raw(f"buffer_store_dword v2, v1, s[4:7], 0 offen offset:{4*k}")]
    if DBG=="2":
        c+=[raw("s_load_dwordx2 s[4:5], s[0:1], 40"),wait(lgkm=0),raw("s_mov_b32 s6, 64"),raw("s_sub_u32 s8, s8, 51200"),raw("v_mov_b32 v1, s8")]
        for k in range(NST[0]+1):
            c+=[raw(f"v_mov_b32 v2, s{74+k}"),raw(f"buffer_store_dword v2, v1, s[4:7], 0 offen offset:{4*k}")]
    if os.environ.get("PADTO"):
        c+=[label("L_PAD"),raw("s_sleep 4"),raw("s_memrealtime s[92:93]"),wait(lgkm=0),raw("s_sub_u32 s92, s92, s95"),raw(f"s_cmp_lt_u32 s92, {os.environ['PADTO']}"),raw("s_cbranch_scc1 L_PAD")]
    print("nstamps",NST[0]+1,file=sys.stderr)
    return c
def endint(): return [wait(vm=0,lgkm=0),barrier()]

def build():
    segs=[]
    pro=prologue(); cv=conv_all(); ln=layernorm(); pre=pre_interval()
    i0=interval(0)+endint()
    head=fix_hazards(insert_waits(pro+cv+ln+pre+i0))
    i1=insert_waits(interval(1)+endint()); i2=insert_waits(interval(2)+[salu("s_sub_u32",sCNT,sCNT,1),salu("s_cmp_lg_u32",None,sCNT,0)]+endint())
    i11=insert_waits(interval(11)+endint()); fin=fix_hazards(insert_waits(final()))
    errs=check_hazards(head+i1+i2+i1+i2+i11+fin,"all")
    for e in errs[:40]: print(e,file=sys.stderr)
    for nm,s in (("pro",pro),("conv",insert_waits(cv)),("ln",ln),("pre",insert_waits(pre)),("i0",insert_waits(i0)),("i1",i1),("i2",i2),("i11",i11),("fin",fin)):
        print(f"{nm}: {len(s)} insts est {est_cycles(s)} cyc",file=sys.stderr)
    if DBG:
        st0=[raw("s_memtime s[92:93]"),raw("s_memrealtime s[90:91]"),wait(lgkm=0),raw("s_mov_b32 s94, s92"),raw("s_mov_b32 s95, s90")]
        head=head[:2]+st0+add_stamps(head[2:]); i11=stamp()+add_stamps(i11); fin=add_stamps(fin)+dump_stamps()
    code=head+[salu("s_mov_b32",sCNT,5),raw(".p2align 6","label",0),label("L_LOOP")]+i1+i2+[raw("s_cbranch_scc1 L_LOOP")]+i11+fin+[label("L_END")]
    return code,errs

HDR=open("standalone__convnext_block__vision.s.ref").read()
def emit(code,path):
    head=HDR[:HDR.index("; @launch")]
    s=head+"; @launch grid=(256,1,1) block=(256,1,1) lds=163840\n"
    s+='''.amdgcn_target "amdgcn-amd-amdhsa--gfx950"
.text
.globl standalone__convnext_block__vision_kernel
.p2align 8
.type standalone__convnext_block__vision_kernel,@function
standalone__convnext_block__vision_kernel:
'''
    for i in code: s+=("" if i.kind=="label" else "    ")+i.txt+"\n"
    s+='''s_endpgm
.section .rodata,"a"
.p2align 6
.amdhsa_kernel standalone__convnext_block__vision_kernel
  .amdhsa_next_free_vgpr 512
  .amdhsa_next_free_sgpr 96
  .amdhsa_accum_offset 256
  .amdhsa_group_segment_fixed_size 0
  .amdhsa_kernarg_size 56
  .amdhsa_user_sgpr_count 2
  .amdhsa_user_sgpr_kernarg_segment_ptr 1
  .amdhsa_system_sgpr_workgroup_id_x 1
.end_amdhsa_kernel
'''
    open(path,"w").write(s)
if __name__=="__main__":
    code,errs=build()
    out=sys.argv[1] if len(sys.argv)>1 else "standalone__convnext_block__vision.s"
    emit(code,out)
    print("hazard errors:",len(errs),file=sys.stderr)
```

```python
from mbgen import MB
import mb4
m=MB()
mb4.m=m
mf16=mb4.mf16
def gelu(nreg,base):
    f=[]
    for i in range(0,nreg,4):
        xs=[base+(i+j)%16 for j in range(4)]; ts=[base+16+j+4*((i//4)%2) for j in range(4)]
        for j in range(4): f.append((f"  v_fmaak_f32 v{ts[j]}, v{xs[j]}, v{xs[j]}, 0x3fc00000",4))
        for j in range(4): f.append((f"  v_mul_f32 v{ts[j]}, v{ts[j]}, v{xs[j]}",4))
        for j in range(4): f.append((f"  v_exp_f32 v{ts[j]}, v{ts[j]}",8))
        for j in range(4): f.append((f"  v_add_f32 v{ts[j]}, 1.0, v{ts[j]}",4))
        for j in range(4): f.append((f"  v_rcp_f32 v{ts[j]}, v{ts[j]}",8))
        for j in range(4): f.append((f"  v_mul_f32 v{ts[j]}, v{ts[j]}, v{xs[j]}",4))
        f.append((f"  v_cvt_pk_bf16_f32 v{base+24+(i//2)%8}, v{ts[0]}, v{ts[1]}",4))
        f.append((f"  v_cvt_pk_bf16_f32 v{base+25+(i//2)%8}, v{ts[2]}, v{ts[3]}",4))
    return f
def memops(n,tr,ndma,ring0=8,nring=12):
    f=[]
    for i in range(n):
        r=ring0+4*(i%nring); off=(i*1024)%65536
        if tr:
            f.append([f"  ds_read_b64_tr_b16 v[{r}:{r+1}], v7 offset:{off}"])
            f.append([f"  ds_read_b64_tr_b16 v[{r+2}:{r+3}], v7 offset:{off+512}"])
        else:
            f.append([f"  ds_read_b128 v[{r}:{r+3}], v6 offset:{off}"])
        if i%2==1: f[-1].append(f"  s_waitcnt lgkmcnt({8 if tr else 4})")
    d=[]
    for i in range(ndma):
        d.append([f"  buffer_load_dwordx4 v1, s[16:19], s31 offen lds", f"  s_add_u32 m0, m0, 1024",f"  s_add_u32 s31, s31, 4096"])
    out=[];j=0
    for i,x in enumerate(f):
        out.append(x)
        while j<len(d) and (j+1)*len(f)<=(i+1)*len(d): out.append(d[j]); j+=1
    return out
def sched(mf,valu,mem):
    n=len(mf); out=[]
    tot=sum(c for _,c in valu)+sum(4*len(x) for x in mem)
    acc=0; vi=0; mi=0
    for i in range(n):
        out.append(mf[i])
        target=tot*(i+1)/n
        while mi<len(mem) and (mi+0.5)*n<=(i+1)*len(mem):
            out+=mem[mi]; acc+=4*len(mem[mi]); mi+=1
        while vi<len(valu) and acc+valu[vi][1]/2<=target:
            out.append(valu[vi][0]); acc+=valu[vi][1]; vi+=1
    while vi<len(valu): out.append(valu[vi][0]); vi+=1
    return "\n".join(out)
def chunk16(ntile,extra_mf,ngelu,tr,ndma,small=False):
    mf=[]
    Db,Xb,Hb,Gb,Ab,xf,cf=(128,160,64,200,0,"a","a")
    if small: Db,Xb,Hb,Gb,Ab,xf,cf=(80,96,56,96,0,"a","a")
    for ht in range(4):
        for pt in range(ntile):
            for ks in range(6):
                mf.append(mf16(Db+4*((ht*ntile+pt)%4), 8+4*((ks+6*(ht%2))%12), Xb+4*((pt*6+ks)%(8 if small else 24)), bf=xf))
    for ct in range(12):
        for pt in range(ntile):
            for ks in range(2):
                mf.append(mf16(Ab+4*((ct*ntile+pt)%(24 if small else 36)), 8+4*((ct*2+ks)%12), Hb+4*(pt*2+ks), cf=cf))
    for i in range(extra_mf): mf.append(mf16((80 if small else 144)+4*(i%4), 8+4*(i%12), 72 if small else 100, cf="a"))
    tail=f"\n  s_and_b32 s31, s31, 0x7ffff\n  s_mov_b32 m0, 65536\n  s_waitcnt vmcnt({ndma})\n  s_barrier"
    return sched(mf,gelu(ngelu,Gb),memops(48,tr,ndma))+tail
def pre(z,g):
    p="  s_mov_b32 s31, 0\n  s_mov_b32 m0, 65536\n"+"".join(f"  v_mov_b32 v{r}, 0\n" for r in range(z,z+4))
    p+="".join(f"  v_cvt_f32_u32 v{r}, v0\n  v_mul_f32 v{r}, 0x3c000000, v{r}\n  v_subrev_f32 v{r}, 1.0, v{r}\n" for r in range(g,g+16))
    return p
def k2(name,bodyA,bodyB,iters,nseg=2,prio=None):
    c="""
  s_load_dwordx4 s[4:7], s[0:1], 0
  v_lshlrev_b32 v1, 4, v0
  s_waitcnt lgkmcnt(0)
  s_mov_b32 s16, s4
  s_mov_b32 s17, s5
  s_mov_b32 s18, 0x4000000
  s_mov_b32 s19, 0x20000
  s_mov_b32 s20, s6
  s_mov_b32 s21, s7
  s_mov_b32 s22, 0x4000000
  s_mov_b32 s23, 0x20000
"""
    for r in range(8,125,4):
        c+=f"  buffer_load_dwordx4 v[{r}:{r+3}], v1, s[16:19], 0 offen offset:{(r*16)%4096}\n"
    c+="  s_waitcnt vmcnt(0)\n"
    for i in range(8):
        c+=f"  ds_write_b128 v1, v[{8+4*i}:{11+4*i}] offset:{i*8192}\n"
    for r in range(0,128):
        c+=f"  v_accvgpr_write_b32 a{r}, v{8+(r%116)}\n"
    c+="  v_and_b32 v6, 63, v0\n  v_lshlrev_b32 v6, 4, v6\n  v_lshrrev_b32 v7, 1, v6\n"
    c+=pre(72,96)
    c+="  v_and_b32 v1, 255, v0\n  v_lshlrev_b32 v1, 4, v1\n"
    c+="  s_waitcnt lgkmcnt(0)\n  s_barrier\n"
    c+=f"""
  v_lshrrev_b32 v2, 6, v0
  s_nop 1
  v_readfirstlane_b32 s33, v2
  s_mul_i32 s9, s2, 8
  v_add_u32 v2, s9, v2
  v_mul_u32_u24 v2, {nseg*2*4}, v2
  s_mov_b32 s30, {nseg}
LO_{name}:
  s_memtime s[10:11]
  s_memrealtime s[24:25]
  s_waitcnt lgkmcnt(0)
  s_mov_b32 s8, {iters}
  s_cmp_ge_u32 s33, 4
  s_cbranch_scc1 LB_{name}
  {"s_setprio 1" if prio=="A" else ""}
.p2align 6
LA_{name}:
{bodyA}
  s_sub_u32 s8, s8, 1
  s_cmp_lg_u32 s8, 0
  s_cbranch_scc1 LA_{name}
  s_branch LE_{name}
LB_{name}:
  {"s_setprio 1" if prio=="B" else ""}
.p2align 6
LB2_{name}:
{bodyB}
  s_sub_u32 s8, s8, 1
  s_cmp_lg_u32 s8, 0
  s_cbranch_scc1 LB2_{name}
LE_{name}:
  s_waitcnt lgkmcnt(0)
  s_memtime s[12:13]
  s_memrealtime s[26:27]
  s_waitcnt lgkmcnt(0)
  s_sub_u32 s12, s12, s10
  s_sub_u32 s26, s26, s24
  v_mov_b32 v4, s12
  v_mov_b32 v5, s26
  buffer_store_dwordx2 v[4:5], v2, s[20:23], 0 offen
  s_waitcnt vmcnt(0)
  v_add_u32 v2, 8, v2
  s_sub_u32 s30, s30, 1
  s_cmp_lg_u32 s30, 0
  s_cbranch_scc1 LO_{name}
"""
    m.raw(name,c,256,512,100000,256,nseg*2,acc=128)
```

```python
from mbgen import MB
m=MB()
def k(name,bodytxt,iters,nseg=3,nv=512,pre="",block=256):
    c="""
  s_load_dwordx4 s[4:7], s[0:1], 0
  v_lshlrev_b32 v1, 4, v0
  s_waitcnt lgkmcnt(0)
  s_mov_b32 s16, s4
  s_mov_b32 s17, s5
  s_mov_b32 s18, 0x4000000
  s_mov_b32 s19, 0x20000
  s_mov_b32 s20, s6
  s_mov_b32 s21, s7
  s_mov_b32 s22, 0x4000000
  s_mov_b32 s23, 0x20000
"""
    for r in range(8,253,4):
        c+=f"  buffer_load_dwordx4 v[{r}:{r+3}], v1, s[16:19], 0 offen offset:{(r*16)%4096}\n"
    c+="  s_waitcnt vmcnt(0)\n"
    for i in range(16):
        c+=f"  ds_write_b128 v1, v[{8+4*i}:{11+4*i}] offset:{i*4096}\n"
    if nv>256:
        for r in range(0,256):
            c+=f"  v_accvgpr_write_b32 a{r}, v{8+(r%240)}\n"
    c+="  v_and_b32 v6, 63, v0\n  v_lshlrev_b32 v6, 4, v6\n  v_lshrrev_b32 v7, 1, v6\n"
    c+=pre
    c+="  s_waitcnt lgkmcnt(0)\n  s_barrier\n"
    c+=f"""
  v_lshrrev_b32 v2, 6, v0
  s_mul_i32 s9, s2, {block//64}
  v_add_u32 v2, s9, v2
  v_mul_u32_u24 v2, {nseg*2*4}, v2
  s_mov_b32 s30, {nseg}
LO_{name}:
  s_memtime s[10:11]
  s_memrealtime s[24:25]
  s_waitcnt lgkmcnt(0)
  s_mov_b32 s8, {iters}
.p2align 6
L_{name}:
{bodytxt}
  s_sub_u32 s8, s8, 1
  s_cmp_lg_u32 s8, 0
  s_cbranch_scc1 L_{name}
  s_waitcnt lgkmcnt(0)
  s_memtime s[12:13]
  s_memrealtime s[26:27]
  s_waitcnt lgkmcnt(0)
  s_sub_u32 s12, s12, s10
  s_sub_u32 s26, s26, s24
  v_mov_b32 v4, s12
  v_mov_b32 v5, s26
  buffer_store_dwordx2 v[4:5], v2, s[20:23], 0 offen
  s_waitcnt vmcnt(0)
  v_add_u32 v2, 8, v2
  s_sub_u32 s30, s30, 1
  s_cmp_lg_u32 s30, 0
  s_cbranch_scc1 LO_{name}
"""
    m.raw(name,c,256,block,100000,nv,nseg*2,acc=256)
def mf16(c,a,b,cf="v",af="v",bf="v"):
    return f"  v_mfma_f32_16x16x32_bf16 {cf}[{c}:{c+3}], {af}[{a}:{a+3}], {bf}[{b}:{b+3}], {cf}[{c}:{c+3}]"
def mf32(c,a,b,cf="v",af="v",bf="v"):
    return f"  v_mfma_f32_32x32x16_bf16 {cf}[{c}:{c+15}], {af}[{a}:{a+3}], {bf}[{b}:{b+3}], {cf}[{c}:{c+15}]"
```

```python
import sys
class MB:
    def __init__(self):
        self.text=[]; self.kd=[]; self.meta=[]; self.spec=[]
    def kernel(self,name,body,pre="",post="",iters=100,grid=256,block=256,lds=0,nvgpr=256,acc=None,nprint=0,per=1):
        wpb=block//64
        if acc is None: acc=min(256,(nvgpr+3)//4*4)
        t=f"""
.globl {name}
.p2align 8
.type {name},@function
{name}:
  s_load_dwordx4 s[4:7], s[0:1], 0
  v_lshlrev_b32 v1, 4, v0
  s_waitcnt lgkmcnt(0)
  s_mov_b32 s16, s4
  s_mov_b32 s17, s5
  s_mov_b32 s18, 0x4000000
  s_mov_b32 s19, 0x20000
  s_mov_b32 s20, s6
  s_mov_b32 s21, s7
  s_mov_b32 s22, 0x4000000
  s_mov_b32 s23, 0x20000
"""
        top=min(nvgpr,acc)
        for r in range(8,top-3,4):
            t+=f"  buffer_load_dwordx4 v[{r}:{r+3}], v1, s[16:19], 0 offen offset:{(r*16)%4096}\n"
        t+="  s_waitcnt vmcnt(0)\n"
        t+=pre+"\n"
        t+=f"""
  s_waitcnt vmcnt(0) lgkmcnt(0)
  s_barrier
  s_memtime s[10:11]
  s_waitcnt lgkmcnt(0)
  s_mov_b32 s8, {iters}
.p2align 6
L_{name}:
{body}
  s_sub_u32 s8, s8, 1
  s_cmp_lg_u32 s8, 0
  s_cbranch_scc1 L_{name}
  s_waitcnt vmcnt(0) lgkmcnt(0)
  s_memtime s[12:13]
  s_waitcnt lgkmcnt(0)
  s_sub_u32 s12, s12, s10
{post}
  v_lshrrev_b32 v2, 6, v0
  s_mul_i32 s9, s2, {wpb}
  v_add_u32 v2, s9, v2
  v_lshlrev_b32 v2, 2, v2
  v_cvt_f32_u32 v3, s12
  v_mul_f32 v3, {100.0/(iters*per)!r}, v3
  v_cvt_u32_f32 v3, v3
  buffer_store_dword v3, v2, s[20:23], 0 offen
  s_endpgm
"""
        self.text.append(t)
        self.kd.append(f"""
.p2align 6
.amdhsa_kernel {name}
  .amdhsa_next_free_vgpr {nvgpr}
  .amdhsa_next_free_sgpr 96
  .amdhsa_accum_offset {acc}
  .amdhsa_group_segment_fixed_size 0
  .amdhsa_kernarg_size 16
  .amdhsa_user_sgpr_count 2
  .amdhsa_user_sgpr_kernarg_segment_ptr 1
  .amdhsa_system_sgpr_workgroup_id_x 1
.end_amdhsa_kernel
""")
        self.meta.append(f"""  - .name: {name}
    .symbol: {name}.kd
    .kernarg_segment_size: 16
    .kernarg_segment_align: 8
    .group_segment_fixed_size: 0
    .private_segment_fixed_size: 0
    .wavefront_size: 64
    .sgpr_count: 96
    .vgpr_count: {nvgpr}
    .max_flat_workgroup_size: {block}
    .args:
      - {{.name: kernargs, .size: 16, .offset: 0, .value_kind: by_value}}
""")
        self.spec.append(f"{name} {grid} {block} {lds} {nprint}")
    def raw(self,name,code,grid,block,lds,nvgpr,nprint,acc=None):
        if acc is None: acc=min(256,(nvgpr+3)//4*4)
        self.text.append(f"""
.globl {name}
.p2align 8
.type {name},@function
{name}:
{code}
  s_endpgm
""")
        self.kd.append(f"""
.p2align 6
.amdhsa_kernel {name}
  .amdhsa_next_free_vgpr {nvgpr}
  .amdhsa_next_free_sgpr 96
  .amdhsa_accum_offset {acc}
  .amdhsa_group_segment_fixed_size 0
  .amdhsa_kernarg_size 16
  .amdhsa_user_sgpr_count 2
  .amdhsa_user_sgpr_kernarg_segment_ptr 1
  .amdhsa_system_sgpr_workgroup_id_x 1
.end_amdhsa_kernel
""")
        self.meta.append(f"""  - .name: {name}
    .symbol: {name}.kd
    .kernarg_segment_size: 16
    .kernarg_segment_align: 8
    .group_segment_fixed_size: 0
    .private_segment_fixed_size: 0
    .wavefront_size: 64
    .sgpr_count: 96
    .vgpr_count: {nvgpr}
    .max_flat_workgroup_size: {block}
    .args:
      - {{.name: kernargs, .size: 16, .offset: 0, .value_kind: by_value}}
""")
        self.spec.append(f"{name} {grid} {block} {lds} {nprint}")
    def write(self,base):
        s='.amdgcn_target "amdgcn-amd-amdhsa--gfx950"\n.text\n'+"".join(self.text)
        s+='.section .rodata,"a"\n'+"".join(self.kd)
        s+=".amdgpu_metadata\n---\namdhsa.version: [1, 2]\namdhsa.kernels:\n"+"".join(self.meta)+"...\n.end_amdgpu_metadata\n"
        open(base+".s","w").write(s)
        open(base+".spec","w").write("\n".join(self.spec)+"\n")
```

```python
import lib9, mb4
from lib9 import *
mf32=mb4.mf32
SD="dst_sel:WORD_1 dst_unused:UNUSED_PRESERVE src0_sel:WORD_1"
def g16(nreg,base):
    f=[]
    for i in range(0,nreg,4):
        xs=[base+(i+j)%16 for j in range(4)]; cs=[base+16,base+17]; ts=[base+18,base+19]; ys=[base+32+j for j in range(4)]
        for j in range(2): f.append((f"  v_cvt_pk_f16_f32 v{cs[j]}, v{xs[2*j]}, v{xs[2*j+1]}",4))
        for j in range(2): f.append((f"  v_pk_fma_f16 v{ts[j]}, v{cs[j]}, v{cs[j]}, s40",4))
        for j in range(2): f.append((f"  v_pk_mul_f16 v{ts[j]}, v{ts[j]}, v{cs[j]}",4))
        for j in range(2): f.append((f"  v_exp_f16 v{cs[j]}, v{ts[j]}",8))
        for j in range(2): f.append((f"  v_exp_f16_sdwa v{cs[j]}, v{ts[j]} {SD}",8))
        for j in range(2): f.append((f"  v_pk_fma_f16 v{cs[j]}, v{cs[j]}, s40, s40",4))
        for j in range(2): f.append((f"  v_rcp_f16 v{ts[j]}, v{cs[j]}",8))
        for j in range(2): f.append((f"  v_rcp_f16_sdwa v{ts[j]}, v{cs[j]} {SD}",8))
        for j in range(2):
            f.append((f"  v_fma_mix_f32 v{ys[2*j]}, v{xs[2*j]}, v{ts[j]}, 0 op_sel:[0,0,0] op_sel_hi:[0,1,0]",4))
            f.append((f"  v_fma_mix_f32 v{ys[2*j+1]}, v{xs[2*j+1]}, v{ts[j]}, 0 op_sel:[0,1,0] op_sel_hi:[0,1,0]",4))
        for j in range(2): f.append((f"  v_cvt_pk_bf16_f32 v{base+24+(i//2+j)%8}, v{ys[2*j]}, v{ys[2*j+1]}",4))
    return f
def schedw(mf,valu,mem):
    W=sum(w for _,w in mf); tot=sum(c for _,c in valu)+sum(c for _,c in mem)+8*len(mf)
    out=[]; acc=0; vi=0; mi=0; cw=0
    for t,w in mf:
        out.append(t); acc+=8; cw+=w
        target=tot*cw/W
        while mi<len(mem) and (mi+0.5)*W<=cw*len(mem):
            out.append(mem[mi][0]); acc+=mem[mi][1]; mi+=1
        while vi<len(valu) and acc+valu[vi][1]/2<=target:
            out.append(valu[vi][0]); acc+=valu[vi][1]; vi+=1
    while vi<len(valu): out.append(valu[vi][0]); vi+=1
    return "\n".join(out)
def n4(g1_16,g2_16,ng=48):
    def G1(s):
        if not g1_16: return [(mf32(96+16*(s%2), 144+4*k, 48*s+4*k, af="a", bf="a"),2) for k in range(12)]
        o=[]
        for ht in range(2):
            for pt in range(2):
                for k in range(6): o.append((mf16(96+16*(s%2)+4*(2*ht+pt),144+4*(6*ht+k),48*s+4*(6*pt+k),af="a",bf="a"),1))
        return o
    g2=[]
    if not g2_16:
        for k in range(4):
            for l in range(3):
                for s in range(3): g2.append((mf32(128+16*((3*s+l)%4), 240+4*((3*k+l)%4), 216+4*((3*k+s)%6), af="a", bf="a"),2))
    else:
        for l in range(6):
            for s in range(6):
                for k in range(2): g2.append((mf16(128+4*((6*l+s)%16), 240+4*((2*l+k)%4), 192+4*((2*s+k)%12), af="a", bf="a"),1))
    n=len(g2)//3
    t12=[(mf16(240+4*(i%4), 144+4*(i%12), 192, af="a"),1) for i in range(12)]
    mf=G1(1)+g2[:n]+t12[:4]+G1(2)+g2[n:2*n]+t12[4:8]+G1(0)+g2[2*n:]+t12[8:]
    mem=[]
    for i in range(84):
        off=(i*1024)%65536
        if i%7==3: mem.append((f"  buffer_load_dwordx4 v1, s[16:19], s31 offen lds\n  s_add_u32 m0, m0, 1024\n  s_add_u32 s31, s31, 4096",20))
        elif i%12==5: mem.append((f"  ds_write_b128 v6, v[224:227] offset:{off}",20))
        elif i%5==0: mem.append((f"  ds_read_b128 a[{216+4*(i%6)}:{219+4*(i%6)}], v6 offset:{off}",4))
        else:
            r=(144+2*(i%24)) if i%2 else (240+2*(i%8))
            mem.append((f"  ds_read_b64_tr_b16 a[{r}:{r+1}], v7 offset:{off}",4))
    tail=f"\n  s_and_b32 s31, s31, 0x7ffff\n  s_mov_b32 m0, 65536\n  s_waitcnt vmcnt(0) lgkmcnt(0)\n  s_barrier"
    return schedw(mf,g16(ng,200),mem)+tail
p2=pre(192,200)+"  s_mov_b32 s40, 0x3e003e00\n"
for r in range(2):
    mb4.k(f"n4_32_32_{r}",n4(0,0),12,nseg=2,pre=p2)
    mb4.k(f"n4_16_32_{r}",n4(1,0),12,nseg=2,pre=p2)
    mb4.k(f"n4_16_16_{r}",n4(1,1),12,nseg=2,pre=p2)
m.write("mb28")
```

```python
import lib9, mb4
from lib9 import *
mf32=mb4.mf32
SD="dst_sel:WORD_1 dst_unused:UNUSED_PRESERVE src0_sel:WORD_1"
def g16(nreg,base):
    f=[]
    for i in range(0,nreg,4):
        xs=[base+(i+j)%16 for j in range(4)]; cs=[base+16,base+17]; ts=[base+18,base+19]; ys=[base+32+j for j in range(4)]
        for j in range(2): f.append((f"  v_cvt_pk_f16_f32 v{cs[j]}, v{xs[2*j]}, v{xs[2*j+1]}",4))
        for j in range(2): f.append((f"  v_pk_fma_f16 v{ts[j]}, v{cs[j]}, v{cs[j]}, s40",4))
        for j in range(2): f.append((f"  v_pk_mul_f16 v{ts[j]}, v{ts[j]}, v{cs[j]}",4))
        for j in range(2): f.append((f"  v_exp_f16 v{cs[j]}, v{ts[j]}",8))
        for j in range(2): f.append((f"  v_exp_f16_sdwa v{cs[j]}, v{ts[j]} {SD}",8))
        for j in range(2): f.append((f"  v_pk_fma_f16 v{cs[j]}, v{cs[j]}, s40, s40",4))
        for j in range(2): f.append((f"  v_rcp_f16 v{ts[j]}, v{cs[j]}",8))
        for j in range(2): f.append((f"  v_rcp_f16_sdwa v{ts[j]}, v{cs[j]} {SD}",8))
        for j in range(2):
            f.append((f"  v_fma_mix_f32 v{ys[2*j]}, v{xs[2*j]}, v{ts[j]}, 0 op_sel:[0,0,0] op_sel_hi:[0,1,0]",4))
            f.append((f"  v_fma_mix_f32 v{ys[2*j+1]}, v{xs[2*j+1]}, v{ts[j]}, 0 op_sel:[0,1,0] op_sel_hi:[0,1,0]",4))
        for j in range(2): f.append((f"  v_cvt_pk_bf16_f32 v{base+24+(i//2+j)%8}, v{ys[2*j]}, v{ys[2*j+1]}",4))
    return f
def schedw(mf,valu,mem):
    W=sum(w for _,w in mf); tot=sum(c for _,c in valu)+sum(c for _,c in mem)+8*len(mf)
    out=[]; acc=0; vi=0; mi=0; cw=0
    for t,w in mf:
        out.append(t); acc+=8; cw+=w
        target=tot*cw/W
        while mi<len(mem) and (mi+0.5)*W<=cw*len(mem):
            out.append(mem[mi][0]); acc+=mem[mi][1]; mi+=1
        while vi<len(valu) and acc+valu[vi][1]/2<=target:
            out.append(valu[vi][0]); acc+=valu[vi][1]; vi+=1
    while vi<len(valu): out.append(valu[vi][0]); vi+=1
    return "\n".join(out)
def n4(g1_16,g2_16,ng=48):
    def G1(s):
        if not g1_16: return [(mf32(96+16*(s%2), 144+4*k, 48*s+4*k, af="a", bf="a"),2) for k in range(12)]
        o=[]
        for ht in range(2):
            for pt in range(2):
                for k in range(6): o.append((mf16(96+16*(s%2)+4*(2*ht+pt),144+4*(6*ht+k),48*s+4*(6*pt+k),af="a",bf="a"),1))
        return o
    g2=[]
    if not g2_16:
        for k in range(4):
            for l in range(3):
                for s in range(3): g2.append((mf32(128+16*((3*s+l)%4), 240+4*((3*k+l)%4), 216+4*((3*k+s)%6), af="a", bf="a"),2))
    else:
        for l in range(6):
            for s in range(6):
                for k in range(2): g2.append((mf16(128+4*((6*l+s)%16), 240+4*((2*l+k)%4), 192+4*((2*s+k)%12), af="a", bf="a"),1))
    n=len(g2)//3
    t12=[(mf16(240+4*(i%4), 144+4*(i%12), 192, af="a"),1) for i in range(12)]
    mf=G1(1)+g2[:n]+t12[:4]+G1(2)+g2[n:2*n]+t12[4:8]+G1(0)+g2[2*n:]+t12[8:]
    mem=[]
    for i in range(84):
        off=(i*1024)%65536
        if i%7==3: mem.append((f"  buffer_load_dwordx4 v1, s[16:19], s31 offen lds\n  s_add_u32 m0, m0, 1024\n  s_add_u32 s31, s31, 4096",20))
        elif i%12==5: mem.append((f"  ds_write_b128 v6, v[224:227] offset:{off}",20))
        elif i%5==0: mem.append((f"  ds_read_b128 a[{216+4*(i%6)}:{219+4*(i%6)}], v6 offset:{off}",4))
        else:
            r=(144+2*(i%24)) if i%2 else (240+2*(i%8))
            mem.append((f"  ds_read_b64_tr_b16 a[{r}:{r+1}], v7 offset:{off}",4))
    tail=f"\n  s_and_b32 s31, s31, 0x7ffff\n  s_mov_b32 m0, 65536\n  s_waitcnt vmcnt(0) lgkmcnt(0)\n  s_barrier"
    return schedw(mf,g16(ng,200),mem)+tail

def n8(ntr=48,ng=24,nt12=4,waits=True):
    mf=[]
    def G1(s):
        o=[]
        for ht in range(2):
            for k in range(6): o.append((mf16(80+4*((2*s+ht)%4),72+4*((6*ht+k)%12),24*s+4*k,af="a",bf="a"),1))
        return o
    g2=[]
    for l in range(6):
        for s in range(3):
            for k in range(2): g2.append((mf16(8+4*((3*l+s)%16), 72+4*((2*l+k)%12), 120+4*(k%2), af="a", bf="a"),1))
    t12=[(mf16(76, 72+4*(i%12), 72, af="a"),1) for i in range(nt12)]
    mf=G1(1)+g2[:12]+G1(2)+g2[12:24]+G1(0)+g2[24:]+t12
    mem=[]; n=ntr+6+3+6
    kinds=["tr"]*n
    for j in range(6): kinds[(j*n)//6+1]="dma"
    for j in range(3): kinds[(j*n)//3+4]="w"
    for j in range(6): kinds[(j*n)//6+6]="b"
    for i,kd in enumerate(kinds):
        off=(i*1024)%65536
        if kd=="dma": mem.append((f"  buffer_load_dwordx4 v1, s[16:19], s31 offen lds\n  s_add_u32 m0, m0, 1024\n  s_add_u32 s31, s31, 4096",0))
        elif kd=="w": mem.append((f"  ds_write_b128 v6, v[120:123] offset:{off}",0))
        elif kd=="b": mem.append((f"  ds_read_b128 a[{120+4*(i%2)}:{123+4*(i%2)}], v6 offset:{off}",0))
        else:
            r=72+2*(i%24)
            mem.append((("  s_waitcnt lgkmcnt(12)\n" if (waits and i%4==0) else "")+f"  ds_read_b64_tr_b16 a[{r}:{r+1}], v7 offset:{off}",0))
    tail=f"\n  s_and_b32 s31, s31, 0x7ffff\n  s_mov_b32 m0, 65536\n  s_waitcnt vmcnt(0) lgkmcnt(0)\n  s_barrier"
    def g16s(nreg):
        f=g16(nreg,96)
        return [(t.replace("v128","v124").replace("v129","v125").replace("v130","v126").replace("v131","v127"),c) for t,c in f]
    return schedw(mf,g16s(ng),mem)+tail

def g16s(nreg):
    f=g16(nreg,96)
    return [(t.replace("v128","v124").replace("v129","v125").replace("v130","v126").replace("v131","v127"),c) for t,c in f]
def memlist(ntr,nb,nw,nd,cost=True):
    n=ntr+nb+nw+nd; kinds=["tr"]*n
    def place(k,cnt,o):
        for j in range(cnt):
            p=(j*n)//cnt+o
            while kinds[p%n]!="tr": p+=1
            kinds[p%n]=k
    if nd: place("dma",nd,1)
    if nw: place("w",nw,2)
    if nb: place("b",nb,0)
    mem=[]
    for i,kd in enumerate(kinds):
        off=(i*1024)%65536
        if kd=="dma": mem.append((f"  buffer_load_dwordx4 v1, s[16:19], s31 offen lds\n  s_add_u32 m0, m0, 1024\n  s_add_u32 s31, s31, 4096",20))
        elif kd=="w": mem.append((f"  ds_write_b128 v6, v[120:123] offset:{off}",20))
        elif kd=="b": mem.append((f"  ds_read_b128 a[{96+4*(i%6)}:{99+4*(i%6)}], v6 offset:{off}",4))
        else:
            r=72+2*(i%12)
            mem.append((("  s_waitcnt lgkmcnt(10)\n" if i%3==0 else "")+f"  ds_read_b64_tr_b16 a[{r}:{r+1}], v7 offset:{off}",4))
    return mem
tail=f"\n  s_and_b32 s31, s31, 0x7ffff\n  s_mov_b32 m0, 65536\n  s_waitcnt vmcnt(0) lgkmcnt(0)\n  s_barrier"
def G1w(ng=48,t=6):
    mf=[]
    for tl in range(12):
        for k in range(6): mf.append((mf16(80+4*(tl%4),72+4*(k%6),4*((6*tl+k)%18),af="a",bf="a"),1))
    mf+=[(mf16(76, 72+4*(i%6), 72, af="a"),1) for i in range(t)]
    return schedw(mf,g16s(ng),memlist(24,0,7,0))+tail
def G2w(ng=0,t=6):
    mf=[]
    for l in range(6):
        for s_ in range(6):
            for k in range(2): mf.append((mf16(8+4*((6*l+s_)%16), 72+4*((2*l+k)%6), 96+4*((2*s_+k)%6), af="a", bf="a"),1))
    mf+=[(mf16(76, 72+4*(i%6), 72, af="a"),1) for i in range(t)]
    return schedw(mf,g16s(ng) if ng else [],memlist(24,14,0,12))+tail
p2=pre(192,200)+"  s_mov_b32 s40, 0x3e003e00\n"
opre=lib9.pre
lib9.pre=lambda z,g: opre(z,g)+"  s_mov_b32 s40, 0x3e003e00\n"
for r in range(2):
    mb4.k(f"n4_32_32_{r}",n4(0,0),12,nseg=2,pre=p2)
    k2(f"r8_{r}",G1w(52),G2w(),12)
    k2(f"r8_pA_{r}",G1w(52),G2w(),12,prio="A")
    k2(f"r8_pB_{r}",G1w(52),G2w(),12,prio="B")
    k2(f"r8_sw_{r}",G2w(),G1w(52),12)
m.write("mb31")
```
